```python
import torch

def _softmax(x, axis=-1):
    return torch.softmax(x, dim=axis)
def _gelu(x):
    return torch.nn.functional.gelu(x, approximate="tanh")
def _silu(x):
    return torch.nn.functional.silu(x)
def _sigmoid(x):
    return torch.sigmoid(x)
def _layernorm(x, axis=-1, eps=1e-5):
    m = x.mean(dim=axis, keepdim=True)
    v = x.var(dim=axis, keepdim=True, unbiased=False)
    return (x - m) / torch.sqrt(v + eps)
def _scatter_add(tgt, idx, src, axis=0):
    return tgt.clone().index_add_(axis, idx, src)
def _segment_sum(src, seg, n):
    out = torch.zeros((n,) + src.shape[1:], dtype=src.dtype)
    return out.index_add_(0, seg, src)
def _pad(x, pw):
    flat = tuple(v for pair in reversed(pw) for v in pair)
    return torch.nn.functional.pad(x, flat)

kernel_name = 'sequential_preLN__sliding_block__geglu_ffn__prompt'

def setup_inputs():

    _w = (lambda a: (lambda t: t.to(torch.bfloat16) if t.is_floating_point() else t)(torch.as_tensor(a)))
    def _A_setup():
        B, S, D = 1, 2048, 448
        return {
            "x": _w((lambda *s: torch.randn(*s, dtype=torch.bfloat16) * 0.05)(B, S, D)),
            "wqkv": _w((lambda *s: torch.randn(*s, dtype=torch.bfloat16) * 0.05)(D, 3 * D)),
            "wo": _w((lambda *s: torch.randn(*s, dtype=torch.bfloat16) * 0.05)(D, D)),
        }
    _A_in = _A_setup()

    def _B_setup():
        B, S, D, F = 1, 2048, 448, 1792
        return {
            "x": _w((lambda *s: torch.randn(*s, dtype=torch.bfloat16) * 0.05)(B, S, D)),
            "w_gate": _w((lambda *s: torch.randn(*s, dtype=torch.bfloat16) * 0.05)(D, F)),
            "w_up": _w((lambda *s: torch.randn(*s, dtype=torch.bfloat16) * 0.05)(D, F)),
            "w_down": _w((lambda *s: torch.randn(*s, dtype=torch.bfloat16) * 0.05)(F, D)),
        }
    _B_in = _B_setup()

    return {
        "A_x": _A_in["x"],
        "A_wqkv": _A_in["wqkv"],
        "A_wo": _A_in["wo"],
        "B_x": _B_in["x"],
        "B_w_gate": _B_in["w_gate"],
        "B_w_up": _B_in["w_up"],
        "B_w_down": _B_in["w_down"],
    }

def reference(A_x, A_wqkv, A_wo, B_x, B_w_gate, B_w_up, B_w_down):
    def _A_ref(x, wqkv, wo):
        B, S, D = x.shape
        H = 16; Dh = D // H; W = 256
        qkv = (lambda x, *d: x.permute(*d))((x @ wqkv).reshape(B, S, 3, H, Dh), 2, 0, 3, 1, 4)
        q, k, v = qkv[0], qkv[1], qkv[2]
        scores = torch.einsum("bhqd,bhkd->bhqk", q, k) * (Dh ** -0.5)
        idx = torch.arange(S)
        mask = (idx[:, None] - idx[None, :] >= 0) & (idx[:, None] - idx[None, :] < W)
        scores = torch.where(mask[None, None], scores, -1e9)
        p = _softmax(scores, axis=-1)
        o = torch.einsum("bhqk,bhkd->bhqd", p, v)
        return (lambda x, *d: x.permute(*d))(o, 0, 2, 1, 3).reshape(B, S, D) @ wo

    def _B_ref(x, w_gate, w_up, w_down):
        return (_gelu(x @ w_gate) * (x @ w_up)) @ w_down

    x = A_x
    h = x + _A_ref(_layernorm(x, axis=-1), A_wqkv, A_wo)
    h2 = h + _B_ref(_layernorm(h, axis=-1), B_w_gate, B_w_up, B_w_down)
    return h2
```

```python
import re

REG_RE = re.compile(r"\b([vas])\[(\d+):(\d+)\]|\b([vas])(\d+)\b|\b(vcc|exec|m0|scc)\b")
TRANS = ("v_exp_f32", "v_log_f32", "v_rcp_f32", "v_rsq_f32", "v_sqrt_f32")


def regs_of(text):
    out = []
    for m in REG_RE.finditer(text):
        if m.group(1):
            out += [(m.group(1), i) for i in range(int(m.group(2)), int(m.group(3)) + 1)]
        elif m.group(4):
            out.append((m.group(4), int(m.group(5))))
        else:
            out.append((m.group(6), 0))
    return out


def split_ops(rest):
    ops, depth, cur = [], 0, ""
    for ch in rest:
        if ch == "[":
            depth += 1
        if ch == "]":
            depth -= 1
        if ch == "," and depth == 0:
            ops.append(cur.strip())
            cur = ""
        else:
            cur += ch
    if cur.strip():
        ops.append(cur.strip())
    return ops


class Ins:
    __slots__ = ("text", "op", "kind", "rd", "wr", "srcc", "srcab", "tok", "opt", "sdata")

    def __init__(self, text, opt=False):
        self.text = text
        self.tok = None
        self.opt = opt
        self.srcc = []
        self.srcab = []
        self.sdata = []
        t = text.split(";")[0].strip()
        parts = t.split(None, 1)
        self.op = op = parts[0]
        rest = parts[1] if len(parts) > 1 else ""
        rest_ops = re.sub(r"\b(op_sel|op_sel_hi|neg_lo|neg_hi|quad_perm):\[[^\]]*\]", "", rest)
        ops = split_ops(rest_ops)
        rd, wr = [], []
        if op.endswith(":"):
            self.kind = "label"
        elif op.startswith("v_mfma"):
            self.kind = "mfma"
            wr = regs_of(ops[0])
            self.srcab = regs_of(ops[1]) + regs_of(ops[2])
            self.srcc = regs_of(ops[3])
            rd = self.srcab + self.srcc
        elif op.startswith("buffer_") or op.startswith("global_"):
            self.kind = "vmem"
            if op in ("buffer_wbl2", "buffer_inv"):
                pass
            elif "load" in op:
                if re.search(r"\blds\b", rest) or "_lds_" in op:
                    rd = regs_of(rest_ops) + [("m0", 0)]
                else:
                    wr = regs_of(ops[0])
                    rd = regs_of(",".join(ops[1:]))
            else:
                rd = regs_of(rest_ops)
                data = ops[0] if op.startswith("buffer_") else ops[1]
                if "x4" in op or "x3" in op:
                    self.sdata = regs_of(data)
        elif op.startswith("ds_"):
            self.kind = "ds"
            if "read" in op:
                wr = regs_of(ops[0])
                rd = regs_of(",".join(ops[1:]))
            else:
                rd = regs_of(rest_ops)
        elif op.startswith("v_"):
            self.kind = "valu"
            wr = regs_of(ops[0])
            rd = regs_of(",".join(ops[1:]))
            if op.startswith("v_permlane") and "swap" in op:
                wr = regs_of(ops[0]) + regs_of(ops[1])
                rd = list(wr)
            if op.startswith(("v_fmac", "v_dot2c", "v_writelane")) or "_dpp" in op or "row_" in rest or "quad_perm" in rest:
                rd = rd + regs_of(ops[0])
            if "_co_" in op:
                wr = regs_of(ops[0]) + regs_of(ops[1])
                rd = regs_of(",".join(ops[2:]))
        elif op.startswith(("s_load", "s_memtime", "s_memrealtime")):
            self.kind = "smem"
            wr = regs_of(ops[0])
            rd = regs_of(",".join(ops[1:]))
        elif op in ("s_waitcnt", "s_nop", "s_barrier", "s_endpgm", "s_branch", "s_setprio", "s_sleep") or op.startswith("s_cbranch"):
            self.kind = "ctl"
        elif op.startswith("s_cmp") or op.startswith("s_bitcmp"):
            self.kind = "salu"
            rd = regs_of(rest_ops)
        elif op.startswith("s_"):
            self.kind = "salu"
            wr = regs_of(ops[0])
            rd = regs_of(",".join(ops[1:]))
        else:
            raise ValueError("unknown instruction: " + text)
        self.rd, self.wr = rd, wr


class Wait:
    def __init__(self, toks):
        self.toks = toks


class Stream:
    def __init__(self):
        self.items = []

    def I(self, text, opt=False):
        ins = Ins(text, opt)
        self.items.append(ins)
        return ins

    def L(self, name):
        self.items.append(Ins(name + ":"))

    def wait(self, *toks):
        flat = []
        for t in toks:
            if isinstance(t, (list, tuple)):
                flat += [x for x in t if x is not None]
            elif t is not None:
                flat.append(t)
        self.items.append(Wait(flat))

    def add(self, items):
        for it in items:
            if isinstance(it, str):
                self.I(it)
            else:
                self.items.append(it)

    def finalize(self):
        out = self._waits()
        out = self._hazards(out)
        lines = []
        for it in out:
            lines.append(it.text if it.kind == "label" else "  " + it.text)
        return lines

    def _waits(self):
        out = []
        vq, lq = [], []
        smem_pending = set()

        def need(queue, ins):
            idx = next((i for i, q in enumerate(queue) if q is ins), None)
            if idx is None:
                return None
            return sum(1 for q in queue[idx + 1:] if not q.opt)

        def apply(vn, ln):
            parts = []
            if vn is not None:
                vn = min(vn, 63)
                parts.append("vmcnt(%d)" % vn)
                trim(vq, vn)
            if ln is not None:
                ln = min(ln, 15)
                parts.append("lgkmcnt(%d)" % ln)
                trim(lq, ln)
                if ln == 0:
                    smem_pending.clear()
            if parts:
                out.append(Ins("s_waitcnt " + " ".join(parts)))

        def trim(queue, n):
            keep, cnt = [], 0
            for q in reversed(queue):
                if not q.opt:
                    if cnt == n:
                        break
                    cnt += 1
                elif n == 0:
                    break
                keep.append(q)
            queue[:] = list(reversed(keep))

        def mn(a, b):
            return b if a is None else (a if b is None else min(a, b))

        for it in self.items:
            if isinstance(it, Wait):
                vn = ln = None
                for t in it.toks:
                    if t.kind == "vmem":
                        vn = mn(vn, need(vq, t))
                    elif t.kind == "ds":
                        ln = mn(ln, need(lq, t))
                apply(vn, ln)
                continue
            if it.op == "s_waitcnt":
                m = re.search(r"vmcnt\((\d+)\)", it.text)
                if m:
                    trim(vq, int(m.group(1)))
                m = re.search(r"lgkmcnt\((\d+)\)", it.text)
                if m:
                    trim(lq, int(m.group(1)))
                    if int(m.group(1)) == 0:
                        smem_pending.clear()
                out.append(it)
                continue
            touched = set(it.rd) | set(it.wr)
            vn = ln = None
            for q in vq:
                if q.wr and touched & set(q.wr):
                    if it.kind == "vmem" and not (set(it.rd) & set(q.wr)):
                        continue
                    vn = mn(vn, need(vq, q))
            for q in lq:
                if q.wr and touched & set(q.wr):
                    if it.kind == "ds" and not (set(it.rd) & set(q.wr)):
                        continue
                    ln = mn(ln, need(lq, q))
            if touched & smem_pending:
                ln = 0
            apply(vn, ln)
            out.append(it)
            if it.kind == "vmem":
                vq.append(it)
            elif it.kind == "ds":
                lq.append(it)
            elif it.kind == "smem":
                smem_pending |= set(it.wr)
        return out

    def _hazards(self, seq):
        out = []
        hist = []

        def states(ins):
            if ins.kind == "label":
                return 0
            if ins.op == "s_nop":
                return int(ins.text.split()[1]) + 1
            return 1

        for it in seq:
            req = 0
            if it.kind not in ("label", "ctl"):
                rd, wr = set(it.rd), set(it.wr)
                is_dpp = it.kind == "valu" and ("quad_perm" in it.text or "row_" in it.text)
                is_perm = it.op.startswith("v_permlane")
                is_rl = it.op.startswith(("v_readlane", "v_readfirstlane"))
                is_dot = it.op.startswith("v_dot")
                dist = 0
                for p in reversed(hist):
                    if dist >= 20:
                        break
                    pw = set(p.wr)
                    n = 0
                    if p.kind == "valu":
                        pv = {r for r in pw if r[0] in "va"}
                        ps = {r for r in pw if r[0] in ("s", "vcc")}
                        pdot = p.op.startswith("v_dot")
                        if it.kind == "mfma" and pv & rd:
                            n = max(n, 3 if pdot else 2)
                        if (is_dpp or is_perm) and pv & rd:
                            n = max(n, 2)
                        if is_rl and pv & rd:
                            n = max(n, 1)
                        if p.op.startswith(TRANS) and it.kind == "valu" and pv & rd and not it.op.startswith(TRANS):
                            n = max(n, 1)
                        if pdot and pv & (rd | wr):
                            same_acc = is_dot and it.op == p.op and not (pv & set(regs_of(",".join(split_ops(it.text.split(None, 1)[1])[1:3]))))
                            if not same_acc:
                                n = max(n, 3)
                        if ps & rd:
                            if it.kind == "valu":
                                n = max(n, 4 if (is_rl or it.op.startswith("v_writelane")) else 2)
                            if it.kind == "vmem":
                                n = max(n, 5)
                        if ("vcc", 0) in ps and it.op.startswith("v_cndmask") and "s[" not in it.text:
                            n = max(n, 2)
                    elif p.kind == "mfma":
                        if it.kind == "mfma":
                            if pw & set(it.srcab):
                                n = max(n, 12)
                            if pw & set(it.srcc) and set(it.srcc) != pw:
                                n = max(n, 10)
                            if pw & wr and not (set(it.srcc) == pw and wr == pw):
                                n = max(n, 10)
                        elif it.kind in ("valu", "vmem", "ds"):
                            if pw & (rd | wr):
                                n = max(n, 12)
                            if it.kind == "valu" and set(p.srcc) & wr:
                                n = max(n, 7)
                            if it.kind in ("ds", "vmem") and set(p.srcc) & wr:
                                n = max(n, 7)
                    elif p.kind == "salu":
                        if ("m0", 0) in pw and it.kind == "vmem" and ("m0", 0) in rd:
                            n = max(n, 1)
                    elif p.kind == "vmem":
                        if p.sdata and set(p.sdata) & wr:
                            n = max(n, 2)
                    req = max(req, n - dist)
                    dist += states(p)
            while req > 0:
                k = min(req, 16)
                nop = Ins("s_nop %d" % (k - 1))
                out.append(nop)
                hist.append(nop)
                req -= k
            out.append(it)
            hist.append(it)
        return out


def weave(main, extra, start=0, every=1, per=1):
    res, e = [], 0
    for i, m in enumerate(main):
        res += m if isinstance(m, list) else [m]
        if i >= start and (i - start) % every == 0:
            for _ in range(per):
                if e < len(extra):
                    x = extra[e]
                    res += x if isinstance(x, list) else [x]
                    e += 1
    while e < len(extra):
        x = extra[e]
        res += x if isinstance(x, list) else [x]
        e += 1
    return res


def vr(base, n=1):
    return "v%d" % base if n == 1 else "v[%d:%d]" % (base, base + n - 1)


def ar(base, n=1):
    return "a%d" % base if n == 1 else "a[%d:%d]" % (base, base + n - 1)


def sr(base, n=1):
    return "s%d" % base if n == 1 else "s[%d:%d]" % (base, base + n - 1)
```

```python
import os
import struct
import sys

sys.path.insert(0, os.path.dirname(os.path.abspath(__file__)))
from asmgen import Ins, Stream, Wait, ar, sr, vr, weave

NAME = "sequential_preLN__sliding_block__geglu_ffn__prompt"


def f2u(x):
    return struct.unpack("<I", struct.pack("<f", x))[0]


class Cfg:
    stamps = False
    alias_act = True
    force_slow = False
    spin = 200000


GS = 0x305000
W_Q, W_K, W_V, W_O = 0x0, 0x40000, 0x80000, 0xC0000
W_KH, W_VH = 0x100000, 0x140000
W_HN = 0x180000
W_ST = 0x1B8000
W_FL = 0x1C0000
F_HELLO, F_QKV, F_O, F_HN, F_ACT = 0x0, 0x100, 0x700, 0x780, 0x800
W_HF = 0x1C1000
W_ACT_SEP = 0x200000
WS_SIZE = 8 * GS
W_DIAG = WS_SIZE
DIAG_SIZE = 256 * 4 * 256
OOB = 0x40000000

sG, sS, sW, sTQ, sC, sXCC, sGB, sPB, sH, sJ = 4, 5, 6, 7, 8, 9, 10, 11, 12, 13
sT0, sT1, sT2, sT3, sT4, sT5 = 14, 15, 16, 17, 18, 19
sTT, sCG, sT, sCTG = 20, 21, 22, 23
sM0, sOFF, sOFF2, sSPIN = 24, 25, 26, 27
sMA, sMB = 28, 30
rX, rWQ, rWO, rWGU, rWD, rOUT, rDBG, rWS = 32, 36, 40, 44, 48, 52, 56, 60
sKA = 64
sSTAMP = 84
sU0, sU1, sU2, sU3, sU4, sU5, sU6, sU7 = 86, 87, 88, 89, 90, 91, 92, 93

vL, vL16, vL8, vL4, vZ1, vONE, vTRB, vD896, vSTMP = 0, 1, 2, 3, 4, 5, 6, 7, 8

XN_T = 29568
L_XN = 0
L_WR = 59136
L_KT, L_VT = 0, 24576
L_WO = 49152
L_XR = L_WO + 57344
L_G1 = L_XR + 8192
L_G2 = 0
L_EX = 65536
L_HR = 0
L_WD = 86016
L_RED = 0
RED_W = 8704
LDS_BYTES = 163840

MF = "v_mfma_f32_32x32x16_bf16"
R = lambda r: sr(r, 4)


class Gen:
    def __init__(self, cfg):
        self.cfg = cfg
        self.ool = []
        self.uid = 0
        self.W_ACT = 0 if cfg.alias_act else W_ACT_SEP

    def lab(self, p):
        self.uid += 1
        return "L_%s_%s_%d" % (self.tag, p, self.uid)

    def stamp(self, S, idx):
        if not self.cfg.stamps:
            return
        S.I("s_memtime %s" % sr(sSTAMP, 2))
        S.I("s_waitcnt lgkmcnt(0)")
        S.I("v_writelane_b32 %s, %s, %d" % (vr(vSTMP), sr(sSTAMP), idx))

    def finish(self, S):
        if self.cfg.stamps:
            S.I("s_waitcnt vmcnt(0)")
            self.stamp(S, 31)
            S.I("s_memrealtime %s" % sr(sSTAMP, 2))
            S.I("s_waitcnt lgkmcnt(0)")
            S.I("v_writelane_b32 %s, %s, 33" % (vr(vSTMP), sr(sSTAMP)))
            S.I("s_lshl_b32 %s, s2, 10" % sr(sT0))
            S.I("s_lshl_b32 %s, %s, 8" % (sr(sT1), sr(sW)))
            S.I("s_add_u32 %s, %s, %s" % (sr(sT0), sr(sT0), sr(sT1)))
            S.I("s_add_u32 %s, %s, 0x%x" % (sr(sT0), sr(sT0), W_DIAG))
            S.I("buffer_store_dword %s, %s, %s, %s offen" % (vr(vSTMP), vr(vL4), R(rWS), sr(sT0)))
        S.I("s_endpgm")

    def poll(self, S, loads, cmps):
        a, b = self.lab("poll"), self.lab("done")
        S.I("s_mov_b32 %s, %d" % (sr(sSPIN), self.cfg.spin))
        S.L(a)
        S.add(loads)
        S.I("s_waitcnt vmcnt(0)")
        S.add(cmps)
        S.I("s_cbranch_vccz %s" % b)
        S.I("s_sub_u32 %s, %s, 1" % (sr(sSPIN), sr(sSPIN)))
        S.I("s_cmp_lg_u32 %s, 0" % sr(sSPIN))
        S.I("s_cbranch_scc1 %s" % a)
        S.L(b)

    def prologue(self, S):
        I = S.I
        I("s_cmp_ge_u32 s2, 256")
        I("s_cbranch_scc1 L_end")
        I("s_load_dwordx8 %s, s[0:1], 0" % sr(sKA, 8))
        I("s_load_dwordx8 %s, s[0:1], 32" % sr(sKA + 8, 8))
        I("s_load_dwordx4 %s, s[0:1], 64" % sr(sKA + 16, 4))
        I("v_lshrrev_b32 v9, 6, v0")
        I("v_and_b32 v0, 63, v0")
        I("v_readfirstlane_b32 %s, v9" % sr(sW))
        I("s_and_b32 %s, s2, 7" % sr(sG))
        I("s_lshr_b32 %s, s2, 3" % sr(sS))
        I("s_mul_i32 %s, %s, 37" % (sr(sTQ), sr(sS)))
        I("s_lshr_b32 %s, %s, 8" % (sr(sTQ), sr(sTQ)))
        I("s_mul_i32 %s, %s, 7" % (sr(sT0), sr(sTQ)))
        I("s_sub_u32 %s, %s, %s" % (sr(sC), sr(sS), sr(sT0)))
        I("s_getreg_b32 %s, hwreg(HW_REG_XCC_ID, 0, 4)" % sr(sXCC))
        I("s_add_u32 %s, %s, 1" % (sr(sXCC), sr(sXCC)))
        I("s_mul_i32 %s, %s, 0x%x" % (sr(sGB), sr(sG), GS))
        I("s_sub_u32 %s, %s, 0x%x" % (sr(sPB), sr(sGB), GS))
        I("s_cmp_eq_u32 %s, 0" % sr(sG))
        I("s_cselect_b32 %s, 0x%x, %s" % (sr(sPB), OOB, sr(sPB)))
        I("s_and_b32 %s, %s, 15" % (sr(sH), sr(sS)))
        I("s_lshr_b32 %s, %s, 4" % (sr(sJ), sr(sS)))
        I("s_and_b32 %s, %s, 1" % (sr(sTT), sr(sW)))
        I("s_lshr_b32 %s, %s, 1" % (sr(sCG), sr(sW)))
        I("s_lshl_b32 %s, %s, 1" % (sr(sT), sr(sTQ)))
        I("s_add_u32 %s, %s, %s" % (sr(sT), sr(sT), sr(sTT)))
        I("s_lshl_b32 %s, %s, 1" % (sr(sCTG), sr(sC)))
        I("s_add_u32 %s, %s, %s" % (sr(sCTG), sr(sCTG), sr(sCG)))
        I("v_lshlrev_b32 %s, 4, v0" % vr(vL16))
        I("v_lshlrev_b32 %s, 3, v0" % vr(vL8))
        I("v_lshlrev_b32 %s, 2, v0" % vr(vL4))
        I("v_mov_b32 %s, 1" % vr(vONE))
        I("v_min_u32 %s, 1, v0" % vr(vZ1))
        I("v_lshlrev_b32 %s, 30, %s" % (vr(vZ1), vr(vZ1)))
        I("v_bfe_u32 v9, v0, 2, 2")
        I("v_lshlrev_b32 %s, 7, v9" % vr(vTRB))
        I("v_bfe_u32 v9, v0, 3, 1")
        I("v_lshl_add_u32 %s, v9, 6, %s" % (vr(vTRB), vr(vTRB)))
        I("v_bfe_u32 v9, v0, 4, 1")
        I("v_lshl_add_u32 %s, v9, 5, %s" % (vr(vTRB), vr(vTRB)))
        I("v_and_b32 v10, 3, v0")
        I("v_lshl_add_u32 %s, v10, 3, %s" % (vr(vTRB), vr(vTRB)))
        I("v_lshlrev_b32 v9, 2, v9")
        I("v_and_b32 v10, 7, v0")
        I("v_xor_b32 v9, v9, v10")
        I("v_lshlrev_b32 v11, 4, v9")
        I("v_lshrrev_b32 v12, 3, v0")
        I("v_mul_u32_u24 %s, 896, v12" % vr(vD896))
        I("v_add_u32 %s, %s, v11" % (vr(vD896), vr(vD896)))
        if self.cfg.stamps:
            I("v_mov_b32 %s, 0" % vr(vSTMP))
            self.stamp(S, 0)
            I("s_memrealtime %s" % sr(sSTAMP, 2))
            I("s_waitcnt lgkmcnt(0)")
            I("v_writelane_b32 %s, %s, 32" % (vr(vSTMP), sr(sSTAMP)))
        I("s_waitcnt lgkmcnt(0)")
        sizes = [(rX, 0, 2048 * 896), (rWQ, 2, 448 * 2688), (rWO, 4, 448 * 896), (rWD, 12, 1792 * 896),
                 (rOUT, 14, 2048 * 896), (rDBG, 16, 256),
                 (rWS, 18, WS_SIZE + (DIAG_SIZE if self.cfg.stamps else 0))]
        for r, k, n in sizes:
            I("s_mov_b32 %s, %s" % (sr(r), sr(sKA + k)))
            I("s_mov_b32 %s, %s" % (sr(r + 1), sr(sKA + k + 1)))
            I("s_mov_b32 %s, 0x%x" % (sr(r + 2), n))
            I("s_mov_b32 %s, 0x20000" % sr(r + 3))
        I("s_cmp_eq_u32 %s, 0" % sr(sCG))
        I("s_cselect_b32 %s, %s, %s" % (sr(rWGU), sr(sKA + 8), sr(sKA + 10)))
        I("s_cselect_b32 %s, %s, %s" % (sr(rWGU + 1), sr(sKA + 9), sr(sKA + 11)))
        I("s_mov_b32 %s, 0x%x" % (sr(rWGU + 2), 448 * 3584))
        I("s_mov_b32 %s, 0x20000" % sr(rWGU + 3))
        I("s_cmp_ge_u32 %s, 28" % sr(sS))
        I("s_cbranch_scc1 L_spare")

    def b2_issue(self, S, vt):
        return S.I("buffer_load_dword %s, %s, %s, 0 offen sc1" % (vr(vt), vr(vL4), R(rDBG)))

    def b2_check(self, S, vt):
        retry, back, dev, out = self.lab("b2r"), self.lab("b2b"), self.lab("b2d"), self.lab("b2o")
        I = S.I
        I("s_add_u32 %s, %s, 7" % (sr(sT2), sr(sG)))
        I("s_and_b32 %s, %s, 7" % (sr(sT2), sr(sT2)))
        I("v_readlane_b32 %s, %s, %s" % (sr(sT0), vr(vt), sr(sG)))
        I("v_readlane_b32 %s, %s, %s" % (sr(sT1), vr(vt), sr(sT2)))
        I("s_min_u32 %s, %s, %s" % (sr(sT1), sr(sT0), sr(sT1)))
        I("s_cmp_eq_u32 %s, 0" % sr(sT1))
        I("s_cbranch_scc1 %s" % retry)
        S.L(back)
        I("s_lshl_b32 %s, %s, 2" % (sr(sT1), sr(sS)))
        I("s_add_u32 %s, %s, %s" % (sr(sT1), sr(sT1), sr(sW)))
        I("s_add_u32 %s, %s, %s" % (sr(sT1), sr(sT1), sr(sGB)))
        I("s_add_u32 %s, %s, 0x%x" % (sr(sT1), sr(sT1), W_FL + F_HELLO))
        if self.cfg.force_slow:
            I("s_cmp_eq_u32 0, 0")
        else:
            I("s_cmp_lg_u32 %s, %s" % (sr(sT0), sr(sXCC)))
        I("s_cbranch_scc1 %s" % dev)
        I("buffer_store_byte %s, %s, %s, %s offen" % (vr(vONE), vr(vZ1), R(rWS), sr(sT1)), opt=True)
        S.L(out)
        O = Stream()
        lp = self.lab("b2l")
        O.L(retry)
        O.I("s_mov_b32 %s, %d" % (sr(sSPIN), self.cfg.spin))
        O.L(lp)
        O.I("buffer_load_dword %s, %s, %s, 0 offen sc1" % (vr(vt), vr(vL4), R(rDBG)))
        O.I("s_waitcnt vmcnt(0)")
        O.I("v_readlane_b32 %s, %s, %s" % (sr(sT0), vr(vt), sr(sG)))
        O.I("v_readlane_b32 %s, %s, %s" % (sr(sT1), vr(vt), sr(sT2)))
        O.I("s_min_u32 %s, %s, %s" % (sr(sT1), sr(sT0), sr(sT1)))
        O.I("s_cmp_lg_u32 %s, 0" % sr(sT1))
        O.I("s_cbranch_scc1 %s" % back)
        O.I("s_sub_u32 %s, %s, 1" % (sr(sSPIN), sr(sSPIN)))
        O.I("s_cmp_lg_u32 %s, 0" % sr(sSPIN))
        O.I("s_cbranch_scc1 %s" % lp)
        O.I("s_branch %s" % back)
        O.L(dev)
        O.I("s_lshl_b32 %s, %s, 2" % (sr(sT1), sr(sG)))
        O.I("buffer_store_dword %s, %s, %s, %s offen offset:32 sc1" % (vr(vONE), vr(vZ1), R(rDBG), sr(sT1)))
        O.I("s_branch %s" % out)
        self.ool.append(O)

    def b3_issue(self, S, vt, va):
        S.I("v_and_b32 %s, 127, %s" % (vr(va), vr(vL4)))
        S.I("s_add_u32 %s, %s, 0x%x" % (sr(sU7), sr(sGB), W_FL))
        return S.I("buffer_load_dword %s, %s, %s, %s offen sc1" % (vr(vt), vr(va), R(rWS), sr(sU7)))

    def b3_check(self, S, vt, va, slow_label):
        retry, back = self.lab("b3r"), self.lab("b3b")
        S.I("v_cmp_ne_u32 vcc, 0x01010101, %s" % vr(vt))
        S.I("s_cbranch_vccnz %s" % retry)
        S.L(back)
        O = Stream()
        lp = self.lab("b3l")
        O.L(retry)
        O.I("s_mov_b32 %s, %d" % (sr(sSPIN), self.cfg.spin))
        O.I("s_add_u32 %s, %s, 8" % (sr(sT2), sr(sG)))
        O.L(lp)
        O.I("buffer_load_dword %s, %s, %s, %s offen sc1" % (vr(vt), vr(va), R(rWS), sr(sU7)))
        O.I("s_waitcnt vmcnt(0)")
        O.I("v_cmp_ne_u32 vcc, 0x01010101, %s" % vr(vt))
        O.I("s_cbranch_vccz %s" % back)
        O.I("buffer_load_dword %s, %s, %s, 0 offen sc1" % (vr(vt), vr(vL4), R(rDBG)))
        O.I("s_waitcnt vmcnt(0)")
        O.I("v_readlane_b32 %s, %s, %s" % (sr(sT0), vr(vt), sr(sT2)))
        O.I("s_cmp_lg_u32 %s, 0" % sr(sT0))
        O.I("s_cbranch_scc1 %s" % slow_label)
        O.I("s_sub_u32 %s, %s, 1" % (sr(sSPIN), sr(sSPIN)))
        O.I("s_cmp_lg_u32 %s, 0" % sr(sSPIN))
        O.I("s_cbranch_scc1 %s" % lp)
        O.I("s_branch %s" % slow_label)
        self.ool.append(O)

    def phase_a(self, S, pol, fork):
        I = S.I
        BF, XR, AC, AF, PK = 16, 128, 184, 216, 232
        vXL, vXW, vXRD, vW0, vW1, vTA, vTA2 = 9, 10, 11, 12, 13, 14, 15
        vKQ, vVV, vB2, vB3, vB3A = 240, 244, 248, 249, 250
        t0, t1, t2, t3 = 16, 17, 18, 19
        I("v_lshrrev_b32 %s, 3, v0" % vr(t0))
        I("v_and_b32 %s, 7, v0" % vr(t1))
        I("v_mul_u32_u24 %s, 896, %s" % (vr(vXL), vr(t0)))
        I("v_lshl_add_u32 %s, %s, 4, %s" % (vr(vXL), vr(t1), vr(vXL)))
        I("s_lshl_b32 %s, %s, 8" % (sr(sT0), sr(sG)))
        I("s_lshl_b32 %s, %s, 6" % (sr(sT1), sr(sTQ)))
        I("s_add_u32 %s, %s, %s" % (sr(sT0), sr(sT0), sr(sT1)))
        I("s_mul_i32 %s, %s, 896" % (sr(sU6), sr(sT0)))
        I("s_mul_i32 %s, %s, %d" % (sr(sT1), sr(sW), 16 * 896))
        I("s_add_u32 %s, %s, %s" % (sr(sT0), sr(sU6), sr(sT1)))
        I("s_add_u32 %s, %s, %d" % (sr(sT1), sr(sT0), 8 * 896))
        for j in range(7):
            for i in range(2):
                I("buffer_load_dwordx4 %s, %s, %s, %s offen offset:%d" % (
                    vr(XR + (i * 7 + j) * 4, 4), vr(vXL), R(rX), sr(sT0 + i), j * 128))
        I("v_mul_u32_u24 %s, %d, %s" % (vr(vW0), 2688 - 896, vr(t0)))
        I("v_add_u32 %s, %s, %s" % (vr(vW0), vr(vW0), vr(vD896)))
        I("s_mul_i32 %s, %s, %d" % (sr(sT2), sr(sW), 2 * 21504))
        I("s_lshl_b32 %s, %s, 7" % (sr(sT3), sr(sC)))
        I("s_add_u32 %s, %s, %s" % (sr(sT2), sr(sT2), sr(sT3)))
        I("v_add_u32 %s, %s, %s" % (vr(vW0), sr(sT2), vr(vW0)))
        I("v_add_u32 %s, %d, %s" % (vr(vW1), 21504 - 1024, vr(vW0)))
        I("s_lshl_b32 %s, %s, 11" % (sr(sM0), sr(sW)))
        I("s_add_u32 %s, %s, %d" % (sr(sM0), sr(sM0), L_WR))
        part_off = [896, 1792, 0]
        wtok = {}

        def wdma(m):
            a = Ins("buffer_load_dwordx4 %s, %s, %s offen lds" % (vr(vW0), R(rWQ), sr(sOFF)))
            b = Ins("buffer_load_dwordx4 %s, %s, %s offen offset:1024 lds" % (vr(vW1), R(rWQ), sr(sOFF)))
            wtok[m] = b
            return [Ins("s_add_u32 m0, %s, %d" % (sr(sM0), (m % 12) * 8192)),
                    Ins("s_mov_b32 %s, %d" % (sr(sOFF), part_off[m // 7] + (m % 7) * 64 * 2688)), a, b]

        S.add(wdma(0))
        S.add(wdma(1))
        I("v_mul_u32_u24 %s, 528, %s" % (vr(vXW), vr(t1)))
        I("v_lshl_add_u32 %s, %s, 4, %s" % (vr(vXW), vr(t0), vr(vXW)))
        I("s_mul_i32 %s, %s, %d" % (sr(sT2), sr(sCG), XN_T))
        I("s_lshl_b32 %s, %s, 8" % (sr(sT3), sr(sTT)))
        I("s_add_u32 %s, %s, %s" % (sr(sT2), sr(sT2), sr(sT3)))
        I("v_add_u32 %s, %s, %s" % (vr(vXW), sr(sT2), vr(vXW)))
        I("v_lshrrev_b32 %s, 5, v0" % vr(t2))
        I("v_lshl_add_u32 %s, %s, 4, %s" % (vr(vXRD), vr(t2), vr(vL16)))
        I("s_mul_i32 %s, %s, %d" % (sr(sT2), sr(sTT), XN_T))
        I("v_add_u32 %s, %s, %s" % (vr(vXRD), sr(sT2), vr(vXRD)))
        I("s_lshl_b32 %s, %s, 6" % (sr(sT2), sr(sCG)))
        I("v_xor_b32 %s, %s, %s" % (vr(vTA), sr(sT2), vr(vTRB)))
        I("v_lshl_add_u32 %s, %s, 10, %s" % (vr(vTA), vr(t2), vr(vTA)))
        I("v_add_u32 %s, %d, %s" % (vr(vTA), L_WR, vr(vTA)))
        I("v_add_u32 %s, %d, %s" % (vr(vTA2), 49152, vr(vTA)))
        I("s_lshl_b32 %s, %s, 3" % (sr(sT2), sr(sCTG)))
        I("s_lshl_b32 %s, %s, 11" % (sr(sT3), sr(sT)))
        I("v_and_b32 %s, 31, v0" % vr(t3))
        for j in range(4):
            g_, hd, gi = 20, 21, 22
            I("v_add3_u32 %s, %s, %s, %d" % (vr(g_), vr(t2), sr(sT2), 2 * j))
            I("v_mul_u32_u24 %s, 147, %s" % (vr(hd), vr(g_)))
            I("v_lshrrev_b32 %s, 10, %s" % (vr(hd), vr(hd)))
            I("v_mul_u32_u24 %s, 7, %s" % (vr(gi), vr(hd)))
            I("v_sub_u32 %s, %s, %s" % (vr(gi), vr(g_), vr(gi)))
            I("v_lshl_add_u32 %s, %s, 14, %s" % (vr(hd), vr(hd), sr(sT3)))
            I("v_lshl_add_u32 %s, %s, 8, %s" % (vr(hd), vr(gi), vr(hd)))
            I("v_lshl_add_u32 %s, %s, 3, %s" % (vr(vKQ + j), vr(t3), vr(hd)))
            I("v_lshlrev_b32 %s, 2, %s" % (vr(gi), vr(gi)))
            I("v_xor_b32 %s, %s, %s" % (vr(gi), vr(gi), vr(t3)))
            I("v_lshl_add_u32 %s, %s, 3, %s" % (vr(vVV + j), vr(gi), vr(hd)))
        st = 24
        for q in range(4):
            I("v_mov_b32 %s, 0" % vr(st + q))
        I("s_mov_b32 %s, 0x3f803f80" % sr(sU0))
        I("s_mov_b32 %s, 0xffff0000" % sr(sU1))
        first = True
        nxt = 2
        for j in range(7):
            for d in range(4):
                for i in range(2):
                    x = XR + (i * 7 + j) * 4 + d
                    I("v_dot2c_f32_bf16 %s, %s, %s" % (vr(st + 2 * i), sr(sU0), vr(x)))
                    I("v_dot2c_f32_bf16 %s, %s, %s" % (vr(st + 2 * i + 1), vr(x), vr(x)))
                if first:
                    self.b2_issue(S, vB2)
                    first = False
            if j in (2, 4, 6):
                S.add(wdma(nxt))
                nxt += 1
        self.stamp(S, 1)
        for mod in ("quad_perm:[1,0,3,2]", "quad_perm:[2,3,0,1]", "row_half_mirror"):
            for q in range(4):
                I("v_add_f32_dpp %s, %s, %s %s row_mask:0xf bank_mask:0xf" % (vr(st + q), vr(st + q), vr(st + q), mod))
        rs = 28
        inv = f2u(1.0 / 448.0)
        for i in range(2):
            I("v_mul_f32 %s, 0x%x, %s" % (vr(st + 2 * i), inv, vr(st + 2 * i)))
            I("v_mul_f32 %s, 0x%x, %s" % (vr(st + 2 * i + 1), inv, vr(st + 2 * i + 1)))
        for i in range(2):
            I("v_fma_f32 %s, -%s, %s, %s" % (vr(st + 2 * i + 1), vr(st + 2 * i), vr(st + 2 * i), vr(st + 2 * i + 1)))
        for i in range(2):
            I("v_max_f32 %s, 0, %s" % (vr(st + 2 * i + 1), vr(st + 2 * i + 1)))
        for i in range(2):
            I("v_add_f32 %s, 0x%x, %s" % (vr(st + 2 * i + 1), f2u(1e-5), vr(st + 2 * i + 1)))
        for i in range(2):
            I("v_rsq_f32 %s, %s" % (vr(rs + 2 * i), vr(st + 2 * i + 1)))
        for i in range(2):
            I("v_mul_f32 %s, -%s, %s" % (vr(rs + 2 * i + 1), vr(st + 2 * i), vr(rs + 2 * i)))
        self.b2_check(S, vB2)
        wr = []
        for j in range(7):
            for i in range(2):
                x = XR + (i * 7 + j) * 4
                tmp = 32
                for d in range(4):
                    I("v_lshlrev_b32 %s, 16, %s" % (vr(tmp + 2 * d), vr(x + d)))
                    I("v_and_b32 %s, %s, %s" % (vr(tmp + 2 * d + 1), sr(sU1), vr(x + d)))
                for d in range(4):
                    I("v_pk_fma_f32 %s, %s, %s, %s op_sel:[0,0,1] op_sel_hi:[1,0,1]" % (
                        vr(tmp + 2 * d, 2), vr(tmp + 2 * d, 2), vr(rs + 2 * i, 2), vr(rs + 2 * i, 2)))
                for d in range(4):
                    I("v_cvt_pk_bf16_f32 %s, %s, %s" % (vr(x + d), vr(tmp + 2 * d), vr(tmp + 2 * d + 1)))
                wr.append(I("ds_write_b128 %s, %s offset:%d" % (vr(vXW), vr(x, 4), L_XN + j * 4224 + i * 128)))
            if j in (0, 2, 4, 6):
                S.add(wdma(nxt))
                nxt += 1
        self.b3_issue(S, vB3, vB3A)
        S.wait(wr, wtok[0])
        I("s_barrier")
        self.stamp(S, 2)

        I("s_lshl_b32 %s, %s, 6" % (sr(sU2), sr(sT)))
        I("s_lshl_b32 %s, %s, 2" % (sr(sT0), sr(sCTG)))
        I("s_add_u32 %s, %s, %s" % (sr(sU2), sr(sU2), sr(sT0)))
        I("s_add_u32 %s, %s, %s" % (sr(sU2), sr(sU2), sr(sU7)))
        I("s_lshl_b32 %s, %s, 9" % (sr(sU3), sr(sT)))
        I("s_lshr_b32 %s, %s, 2" % (sr(sT0), sr(sCTG)))
        I("s_lshl_b32 %s, %s, 7" % (sr(sT0), sr(sT0)))
        I("s_add_u32 %s, %s, %s" % (sr(sU3), sr(sU3), sr(sT0)))
        I("s_and_b32 %s, %s, 3" % (sr(sT0), sr(sCTG)))
        I("s_lshl_b32 %s, %s, 2" % (sr(sT0), sr(sT0)))
        I("s_add_u32 %s, %s, %s" % (sr(sU3), sr(sU3), sr(sT0)))
        I("s_add_u32 %s, %s, %s" % (sr(sU3), sr(sU3), sr(sGB)))
        I("s_add_u32 %s, %s, 0x%x" % (sr(sU3), sr(sU3), W_HF))
        I("s_add_u32 %s, %s, 0x1000" % (sr(sU4), sr(sU3)))
        I("s_mov_b32 %s, 0x%x" % (sr(sU5), f2u(28 ** -0.5 * 1.4426950408889634)))

        def a_reads(step):
            m, ks = divmod(step, 4)
            slot = m % 12
            base, off = (vTA, slot * 8192) if slot < 6 else (vTA2, (slot - 6) * 8192)
            d = AF + (step % 4) * 4
            out = [Ins("ds_read_b64_tr_b16 %s, %s offset:%d" % (vr(d + 2 * jj, 2), vr(base), off + ks * 2048 + jj * 512))
                   for jj in range(2)]
            if step < 28:
                out.append(Ins("ds_read_b128 %s, %s offset:%d" % (vr(BF + step * 4, 4), vr(vXRD), L_XN + step * 1056)))
            return out

        def epilogue(p):
            acc = AC + (p % 2) * 16
            out = []
            if p == 2:
                out += [Ins("v_mul_f32 %s, %s, %s" % (vr(acc + r), sr(sU5), vr(acc + r))) for r in range(16)]
            out += [Ins("v_cvt_pk_bf16_f32 %s, %s, %s" % (vr(PK + r), vr(acc + 2 * r), vr(acc + 2 * r + 1))) for r in range(8)]
            va = vVV if p == 1 else vKQ
            stores = []
            if p < 2:
                out.append(Ins("s_add_u32 %s, %s, 0x%x" % (sr(sOFF2), sr(sGB), [W_KH, W_VH][p])))
                for j in range(4):
                    stores.append(Ins("buffer_store_dwordx2 %s, %s, %s, %s offen sc1" % (vr(PK + 2 * j, 2), vr(va + j), R(rWS), sr(sOFF2))))
                out += stores
            out.append(Ins("s_add_u32 %s, %s, 0x%x" % (sr(sT5), sr(sGB), [W_K, W_V, W_Q][p])))
            for j in range(4):
                stores.append(Ins("buffer_store_dwordx2 %s, %s, %s, %s offen%s" % (vr(PK + 2 * j, 2), vr(va + j), R(rWS), sr(sT5), pol)))
                out.append(stores[-1])
            return out, stores

        def flags(p):
            out = []
            if p < 2:
                out.append(Ins("buffer_store_dword %s, %s, %s, %s offen sc1" % (vr(vONE), vr(vZ1), R(rWS), sr([sU3, sU4][p]))))
            out.append(Ins("buffer_store_dword %s, %s, %s, %s offen offset:%d%s" % (
                vr(vONE), vr(vZ1), R(rWS), sr(sU2), F_QKV + [1, 2, 0][p] * 512, pol)))
            return out

        LOOK = 2
        for s_ in range(LOOK):
            S.add(a_reads(s_))
        pend = []
        flag_at = {}
        for step in range(84):
            p, ks = divmod(step, 28)
            acc = AC + (p % 2) * 16
            if step == 30:
                fork(S, vB3, vB3A)
            if step in (30, 58):
                pend, stores = epilogue(p - 1)
                flag_at[step + 16] = (p - 1, stores)
                if step == 30:
                    pend += [Ins("s_mul_i32 %s, %s, 14" % (sr(sT0), sr(sT))),
                             Ins("s_add_u32 %s, %s, %s" % (sr(sT0), sr(sT0), sr(sCTG))),
                             Ins("s_lshl_b32 %s, %s, 8" % (sr(sT0), sr(sT0))),
                             Ins("s_add_u32 %s, %s, %s" % (sr(sT0), sr(sT0), sr(sGB))),
                             Ins("s_add_u32 %s, %s, 0x%x" % (sr(sT0), sr(sT0), W_ST)),
                             Ins("v_mov_b32 %s, 0" % vr(251)),
                             Ins("buffer_store_dword %s, %s, %s, %s offen%s" % (vr(251), vr(vL4), R(rWS), sr(sT0), pol))]
            I("%s %s, %s, %s, %s" % (MF, vr(acc, 16), vr(AF + (step % 4) * 4, 4), vr(BF + ks * 4, 4),
                                    "0" if ks == 0 else vr(acc, 16)))
            nx = step + LOOK
            if nx < 84:
                if nx % 4 == 0:
                    S.wait(wtok[nx // 4])
                    I("s_barrier")
                    if nxt < 21:
                        S.add(wdma(nxt))
                        nxt += 1
                S.add(a_reads(nx))
            S.add(pend[:3])
            pend = pend[3:]
            if step in flag_at:
                S.wait(flag_at[step][1])
                S.add(flags(flag_at[step][0]))
            if step in (27, 55):
                self.stamp(S, 3 + p)
        ep, stores = epilogue(2)
        S.add(ep)
        I("s_barrier")
        self.stamp(S, 5)
        return stores, flags(2)

    def phase_b(self, S, pol, worker, pre=None):
        I = S.I
        KF, QF, S0, BA, BB, O, P, VF = 16, 88, 96, 128, 144, 160, 176, 192
        t0, t1, t2, t3 = 208, 209, 210, 211
        vFL, vFH, vF1, vKR, vVR, vNEG, vZERO = 224, 225, 226, 227, 228, 232, 233
        gtok = []
        if worker:
            I("s_lshl_b32 %s, %s, 7" % (sr(sT0), sr(sC)))
            I("s_mul_i32 %s, %s, %d" % (sr(sT1), sr(sW), 14 * 7168))
            I("s_add_u32 %s, %s, %s" % (sr(sOFF), sr(sT0), sr(sT1)))
            I("s_mul_i32 %s, %s, %d" % (sr(sM0), sr(sW), 14 * 1024))
            I("v_add_u32 %s, %d, %s" % (vr(t0), 7168 - 1024, vr(vD896)))
            for i in range(7):
                I("s_add_u32 m0, %s, %d" % (sr(sM0), L_WO + i * 2048))
                I("buffer_load_dwordx4 %s, %s, %s offen lds" % (vr(vD896), R(rWO), sr(sOFF)))
                I("buffer_load_dwordx4 %s, %s, %s offen offset:1024 lds" % (vr(t0), R(rWO), sr(sOFF)))
                if i < 6:
                    I("s_add_u32 %s, %s, %d" % (sr(sOFF), sr(sOFF), 2 * 7168))
                if i == 0 and pre:
                    S.wait(pre[0])
                    S.add(pre[1])
            I("v_lshrrev_b32 %s, 3, v0" % vr(t1))
            I("v_lshrrev_b32 %s, 4, v0" % vr(t2))
            I("v_and_b32 %s, 7, v0" % vr(t3))
            I("v_xor_b32 %s, %s, %s" % (vr(t2), vr(t2), vr(t3)))
            I("v_mul_u32_u24 %s, 896, %s" % (vr(t1), vr(t1)))
            I("v_lshl_add_u32 %s, %s, 4, %s" % (vr(t1), vr(t2), vr(t1)))
            I("v_xor_b32 %s, 64, %s" % (vr(t2), vr(t1)))
            I("v_add_u32 %s, %d, %s" % (vr(t2), 7168 - 1024, vr(t2)))
            I("s_mul_i32 %s, %s, %d" % (sr(sT1), sr(sW), 16 * 896))
            I("s_add_u32 %s, %s, %s" % (sr(sT1), sr(sT1), sr(sT0)))
            I("s_add_u32 %s, %s, %s" % (sr(sT1), sr(sT1), sr(sU6)))
            I("s_lshl_b32 %s, %s, 11" % (sr(sT2), sr(sW)))
            I("s_add_u32 m0, %s, %d" % (sr(sT2), L_XR))
            I("buffer_load_dwordx4 %s, %s, %s offen lds" % (vr(t1), R(rX), sr(sT1)))
            I("buffer_load_dwordx4 %s, %s, %s offen offset:1024 lds" % (vr(t2), R(rX), sr(sT1)))
        I("s_lshl_b32 %s, %s, 2" % (sr(sU0), sr(sJ)))
        I("s_add_u32 %s, %s, %s" % (sr(sU0), sr(sU0), sr(sW)))
        I("s_xor_b32 %s, %s, 4" % (sr(sU1), sr(sU0)))
        I("s_mul_i32 %s, %s, 28" % (sr(sT0), sr(sH)))
        I("v_and_b32 %s, 1, v0" % vr(t0))
        I("v_mul_u32_u24 %s, 27, %s" % (vr(t0), vr(t0)))
        I("v_add_u32 %s, %s, %s" % (vr(t0), sr(sT0), vr(t0)))
        I("v_lshrrev_b32 %s, 5, %s" % (vr(t0), vr(t0)))
        I("v_lshlrev_b32 %s, 2, %s" % (vr(vFL), vr(t0)))
        I("v_lshrrev_b32 %s, 2, %s" % (vr(t1), vr(t0)))
        I("v_and_b32 %s, 3, %s" % (vr(t2), vr(t0)))
        I("v_lshlrev_b32 %s, 2, %s" % (vr(t2), vr(t2)))
        I("v_lshl_add_u32 %s, %s, 7, %s" % (vr(vFH), vr(t1), vr(t2)))
        I("s_add_u32 %s, %s, 0x%x" % (sr(sU7), sr(sGB), W_FL + F_QKV))
        I("s_lshl_b32 %s, %s, 6" % (sr(sT0), sr(sU0)))
        I("s_add_u32 %s, %s, %s" % (sr(sU2), sr(sU7), sr(sT0)))
        I("v_lshrrev_b32 %s, 5, v0" % vr(t3))
        I("v_mul_u32_u24 %s, %d, %s" % (vr(t0), L_VT - L_KT - 256, vr(t3)))
        I("s_lshl_b32 %s, %s, 11" % (sr(sM0), sr(sW)))
        I("v_add3_u32 %s, %s, %s, %s" % (vr(t0), vr(t0), vr(vL8), sr(sM0)))
        I("v_cmp_eq_u32 vcc, 0, %s" % vr(t3))
        I("v_mov_b32 %s, 0x3f80" % vr(212))
        I("v_mov_b32 %s, 0x3f803f80" % vr(213))
        I("v_mov_b32 %s, 0" % vr(vZERO))
        I("v_mov_b32 %s, 0x%x" % (vr(vNEG), f2u(-1e30)))
        I("v_cndmask_b32 %s, %s, %s, vcc" % (vr(214), vr(212), vr(213)))
        I("v_mov_b32 %s, %s" % (vr(216), vr(214)))
        I("v_mov_b32 %s, %s" % (vr(218), vr(214)))
        negbf = (f2u(-1e30) & 0xffff0000) | 0x3f80
        I("s_cmp_eq_u32 %s, 0" % sr(sG))
        I("s_cselect_b32 %s, 1, 0" % sr(sT0))
        I("s_mul_i32 %s, %s, 0x%x" % (sr(sT1), sr(sT0), negbf & 0xffff0000))
        I("s_or_b32 %s, %s, 0x3f80" % (sr(sT1), sr(sT1)))
        I("s_cmp_eq_u32 %s, 0" % sr(sJ))
        I("s_cselect_b32 %s, %s, 0x3f80" % (sr(sT2), sr(sT1)))
        I("v_mov_b32 %s, %s" % (vr(215), sr(sT1)))
        I("v_mov_b32 %s, %s" % (vr(217), sr(sT2)))
        I("v_cndmask_b32 %s, %s, %s, vcc" % (vr(215), vr(vZERO), vr(215)))
        I("v_cndmask_b32 %s, %s, %s, vcc" % (vr(217), vr(vZERO), vr(217)))
        I("v_cndmask_b32 %s, %s, %s, vcc" % (vr(219), vr(vZERO), vr(212)))
        padw = [I("ds_write_b64 %s, %s offset:%d" % (vr(t0), vr(214 + 2 * b, 2), L_KT + 1792 + b * 8192)) for b in range(3)]
        I("s_lshl_b32 %s, %s, 14" % (sr(sT0), sr(sH)))
        I("s_lshl_b32 %s, %s, 11" % (sr(sT1), sr(sU0)))
        I("s_add_u32 %s, %s, %s" % (sr(sU3), sr(sT0), sr(sT1)))
        I("s_xor_b32 %s, %s, 0x2000" % (sr(sU4), sr(sU3)))

        def kv_dma(blocks):
            toks = []
            for lds, so in blocks:
                I("s_add_u32 m0, %s, %d" % (sr(sM0), lds))
                I("buffer_load_dwordx4 %s, %s, %s offen sc1 lds" % (vr(vL16), R(rWS), sr(so)))
                I("s_mov_b32 exec_hi, 0xffff")
                toks.append(I("buffer_load_dwordx4 %s, %s, %s offen offset:1024 sc1 lds" % (vr(vL16), R(rWS), sr(so))))
                I("s_mov_b32 exec_hi, -1")
            return toks

        ne1 = ["v_cmp_ne_u32 vcc, 1, %s" % vr(t1)]
        I("v_bfe_u32 %s, v0, 1, 1" % vr(t2))
        I("v_lshl_add_u32 %s, %s, 9, %s" % (vr(t2), vr(t2), vr(vFL)))
        self.poll(S, ["buffer_load_dword %s, %s, %s, %s offen offset:512 sc1" % (vr(t1), vr(t2), R(rWS), sr(sU2))], ne1)
        I("s_add_u32 %s, %s, %s" % (sr(sT0), sr(sU3), sr(sGB)))
        I("s_add_u32 %s, %s, 0x%x" % (sr(sT1), sr(sT0), W_K))
        I("s_add_u32 %s, %s, 0x%x" % (sr(sT2), sr(sT0), W_V))
        kv_dma([(L_KT + 16384, sT1), (L_VT + 16384, sT2)])
        I("v_and_b32 %s, 31, v0" % vr(t0))
        I("v_lshlrev_b32 %s, 2, %s" % (vr(t2), vr(t3)))
        I("v_sub_u32 %s, %s, %s" % (vr(t0), vr(t0), vr(t2)))
        for r in range(0, 16, 2):
            for q in range(2):
                I("v_cmp_le_i32 %s, %d, %s" % (sr([sMA, sMB][q], 2), 8 * ((r + q) // 4) + (r + q) % 4, vr(t0)))
            for q in range(2):
                I("v_cndmask_b32 %s, %s, %s, %s" % (vr(BA + r + q), vr(vNEG), vr(vZERO), sr([sMA, sMB][q], 2)))
                I("v_cndmask_b32 %s, %s, %s, %s" % (vr(BB + r + q), vr(vZERO), vr(vNEG), sr([sMA, sMB][q], 2)))
        I("v_add_u32 %s, %s, %s" % (vr(vKR), sr(sM0), vr(vL8)))
        I("v_bfe_u32 %s, v0, 4, 1" % vr(t0))
        I("v_and_b32 %s, 3, v0" % vr(t1))
        I("v_lshl_add_u32 %s, %s, 2, %s" % (vr(t0), vr(t0), vr(t1)))
        I("v_bfe_u32 %s, v0, 2, 2" % vr(t1))
        I("v_lshl_add_u32 %s, %s, 2, %s" % (vr(t1), vr(t3), vr(t1)))
        I("v_lshlrev_b32 %s, 2, %s" % (vr(t2), vr(t0)))
        I("v_xor_b32 %s, %s, %s" % (vr(t1), vr(t1), vr(t2)))
        I("v_lshlrev_b32 %s, 3, %s" % (vr(t1), vr(t1)))
        I("v_lshl_add_u32 %s, %s, 8, %s" % (vr(t1), vr(t0), vr(t1)))
        I("v_add_u32 %s, %s, %s" % (vr(vVR), sr(sM0), vr(t1)))
        for r in range(1, 4):
            I("v_xor_b32 %s, %d, %s" % (vr(vVR + r), r * 64, vr(vVR)))
        self.poll(S, ["buffer_load_dword %s, %s, %s, %s offen sc1" % (vr(t1), vr(vFL), R(rWS), sr(sU2))], ne1)
        self.stamp(S, 6)
        I("s_add_u32 %s, %s, %s" % (sr(sT0), sr(sU3), sr(sGB)))
        for q in range(4):
            I("buffer_load_dwordx2 %s, %s, %s, %s offen offset:%d sc1" % (vr(QF + 2 * q, 2), vr(vL8), R(rWS), sr(sT0), W_Q + q * 512))
        I("s_lshl_b32 %s, %s, 9" % (sr(sT0), sr(sU0)))
        I("s_add_u32 %s, %s, %s" % (sr(sT0), sr(sT0), sr(sPB)))
        I("s_add_u32 %s, %s, 0x%x" % (sr(sT0), sr(sT0), W_HF))
        I("s_lshl_b32 %s, %s, 9" % (sr(sT1), sr(sU1)))
        I("s_add_u32 %s, %s, %s" % (sr(sT1), sr(sT1), sr(sPB)))
        I("s_add_u32 %s, %s, 0x%x" % (sr(sT1), sr(sT1), W_HF))
        I("s_lshl_b32 %s, %s, 6" % (sr(sT2), sr(sU1)))
        I("s_add_u32 %s, %s, %s" % (sr(sT2), sr(sT2), sr(sU7)))
        I("v_add_u32 %s, %s, %s" % (vr(212), sr(sT0), vr(vFH)))
        I("v_add_u32 %s, 0x1000, %s" % (vr(213), vr(212)))
        I("v_add_u32 %s, %s, %s" % (vr(214), sr(sT1), vr(vFH)))
        I("v_add_u32 %s, 0x1000, %s" % (vr(215), vr(214)))
        I("v_add_u32 %s, %s, %s" % (vr(216), sr(sT2), vr(vFL)))
        I("v_add_u32 %s, 1024, %s" % (vr(217), vr(216)))
        I("v_add_u32 %s, 512, %s" % (vr(216), vr(216)))
        I("v_add_u32 %s, %s, %s" % (vr(218), sr(sU2), vr(vFL)))
        I("s_cmp_eq_u32 %s, 0" % sr(sG))
        I("s_cselect_b64 %s, -1, 0" % sr(sMA, 2))
        for q in range(4):
            I("v_cndmask_b32 %s, %s, %s, %s" % (vr(212 + q), vr(212 + q), vr(218), sr(sMA, 2)))
        I("s_cmp_eq_u32 %s, 1" % sr(sJ))
        I("s_cselect_b64 %s, -1, 0" % sr(sMA, 2))
        for q in range(2):
            I("v_cndmask_b32 %s, %s, %s, %s" % (vr(214 + q), vr(214 + q), vr(216 + q), sr(sMA, 2)))
        I("s_add_u32 %s, %s, 0x%x" % (sr(sT0), sr(sPB), W_KH))
        I("s_add_u32 %s, %s, 0x%x" % (sr(sT1), sr(sGB), W_K))
        I("s_cmp_eq_u32 %s, 1" % sr(sJ))
        I("s_cselect_b32 %s, %s, %s" % (sr(sT1), sr(sT1), sr(sT0)))
        I("s_add_u32 %s, %s, %s" % (sr(sT3), sr(sT0), sr(sU3)))
        I("s_add_u32 %s, %s, %s" % (sr(sT4), sr(sT1), sr(sU4)))
        I("v_bfe_u32 %s, v0, 1, 1" % vr(t2))
        I("v_cmp_eq_u32 vcc, 1, %s" % vr(t2))
        I("v_cndmask_b32 %s, %s, %s, vcc" % (vr(212), vr(212), vr(214)))
        I("v_cndmask_b32 %s, %s, %s, vcc" % (vr(213), vr(213), vr(215)))
        I("s_mov_b32 exec_lo, 0")
        I("v_mov_b32 %s, 0" % vr(QF + 6))
        I("v_mov_b32 %s, 1.0" % vr(QF + 7))
        I("s_mov_b32 exec_lo, -1")
        if worker:
            I("s_barrier")
            I("s_lshl_b32 %s, %s, 6" % (sr(sT0), sr(sCG)))
            I("v_xor_b32 %s, %s, %s" % (vr(t0), sr(sT0), vr(vTRB)))
            I("v_lshl_add_u32 %s, %s, 9, %s" % (vr(t0), vr(t3), vr(t0)))
            I("s_mul_i32 %s, %s, %d" % (sr(sT0), sr(sCG), 8 * 3584))
            I("s_add_u32 %s, %s, %d" % (sr(sT0), sr(sT0), L_WO))
            I("v_add_u32 %s, %s, %s" % (vr(t0), sr(sT0), vr(t0)))
            I("v_xor_b32 %s, 64, %s" % (vr(t2), vr(t0)))
            for hd in range(8):
                for u in range(2):
                    for sl in range(2):
                        for jj in range(2):
                            d = 112 + ((hd * 2 + u) * 2 + sl) * 4 + 2 * jj
                            I("ds_read_b64_tr_b16 %s, %s offset:%d" % (ar(d, 2), vr([t0, t2][sl]), hd * 3584 + u * 2048 + jj * 1024))
        self.poll(S, ["buffer_load_dword %s, %s, %s, 0 offen sc1" % (vr(t1), vr(212), R(rWS))], ne1)
        self.stamp(S, 7)
        ktok = kv_dma([(L_KT, sT3), (L_KT + 8192, sT4)])
        I("s_add_u32 %s, %s, 0x40000" % (sr(sT3), sr(sT3)))
        I("s_add_u32 %s, %s, 0x40000" % (sr(sT4), sr(sT4)))
        self.poll(S, ["buffer_load_dword %s, %s, %s, 0 offen sc1" % (vr(t1), vr(213), R(rWS))], ne1)
        vtok = kv_dma([(L_VT, sT3), (L_VT + 8192, sT4)])
        if worker:
            gtok += self.gu_dma(S, 0, 12, L_G1)
        S.wait(padw)
        I("s_barrier")
        self.stamp(S, 8)

        def kreads(t):
            return [Ins("ds_read_b64 %s, %s offset:%d" % (vr(KF + t * 8 + 2 * q, 2), vr(vKR), L_KT + t * 2048 + q * 512)) for q in range(4)]

        def qk(t):
            s_ = S0 + (t % 2) * 16
            c = vr(BB, 16) if t == 0 else (vr(BA, 16) if t == 8 else "0")
            return [Ins("%s %s, %s, %s, %s" % (MF, vr(s_, 16), vr(KF + t * 8, 4), vr(QF, 4), c)),
                    Ins("%s %s, %s, %s, %s" % (MF, vr(s_, 16), vr(KF + t * 8 + 4, 4), vr(QF + 4, 4), vr(s_, 16)))]

        def maxes(t):
            s_ = S0 + (t % 2) * 16
            out = []
            for q in range(8):
                m = t0 + (q % 2)
                if t == 0 and q < 2:
                    out.append(Ins("v_max_f32 %s, %s, %s" % (vr(m), vr(s_ + 2 * q), vr(s_ + 2 * q + 1))))
                else:
                    out.append(Ins("v_max3_f32 %s, %s, %s, %s" % (vr(m), vr(m), vr(s_ + 2 * q), vr(s_ + 2 * q + 1))))
            return out

        S.add(kreads(0))
        S.add(kreads(1))
        for t in range(9):
            a, b = qk(t)
            S.add([a])
            if t + 2 < 9:
                S.add(kreads(t + 2))
            S.add([b])
            if t > 0:
                S.add(maxes(t - 1))
        S.add(maxes(8))
        I("v_max_f32 %s, %s, %s" % (vr(t0), vr(t0), vr(t1)))
        I("v_mov_b32 %s, %s" % (vr(t1), vr(t0)))
        I("v_permlane32_swap_b32 %s, %s" % (vr(t0), vr(t1)))
        I("v_max_f32 %s, %s, %s" % (vr(t0), vr(t0), vr(t1)))
        I("s_mov_b32 %s, 0xffff0000" % sr(sT0))
        I("s_mov_b32 %s, 0x07060302" % sr(sT1))
        I("v_sub_f32 %s, 0, %s" % (vr(t0), vr(t0)))
        I("v_and_b32 %s, %s, %s" % (vr(t1), sr(sT0), vr(t0)))
        I("v_sub_f32 %s, %s, %s" % (vr(t1), vr(t0), vr(t1)))
        I("v_and_b32 %s, %s, %s" % (vr(t2), sr(sT0), vr(t1)))
        I("v_sub_f32 %s, %s, %s" % (vr(t2), vr(t1), vr(t2)))
        I("s_mov_b32 exec_lo, 0")
        I("v_perm_b32 %s, %s, %s, %s" % (vr(QF + 6), vr(t1), vr(t0), sr(sT1)))
        I("v_perm_b32 %s, %s, %s, %s" % (vr(QF + 7), vr(QF + 7), vr(t2), sr(sT1)))
        I("s_mov_b32 exec_lo, -1")
        S.wait(vtok)
        I("s_barrier")
        self.stamp(S, 9)

        def vreads(t):
            return [Ins("ds_read_b64_tr_b16 %s, %s offset:%d" % (vr(VF + (t % 2) * 8 + 2 * r, 2), vr(vVR + r), L_VT + t * 2048)) for r in range(4)]

        S.add(qk(0))
        S.add(vreads(0))
        for t in range(9):
            s_ = S0 + (t % 2) * 16
            ex = [Ins("v_exp_f32 %s, %s" % (vr(s_ + r), vr(s_ + r))) for r in range(16)]
            cv = [Ins("v_cvt_pk_bf16_f32 %s, %s, %s" % (vr(P + (t % 2) * 8 + r), vr(s_ + 2 * r), vr(s_ + 2 * r + 1))) for r in range(8)]
            pv = [Ins("%s %s, %s, %s, %s" % (MF, vr(O, 16), vr(VF + (t % 2) * 8 + 4 * u, 4), vr(P + (t % 2) * 8 + 4 * u, 4),
                                             "0" if (t == 0 and u == 0) else vr(O, 16))) for u in range(2)]
            n = qk(t + 1) if t < 8 else [None, None]
            vq = vreads(t + 1) if t < 8 else []
            seq = [n[0]] + ex[0:4] + [n[1]] + ex[4:9] + cv[0:4] + ex[9:11] + [pv[0]] + ex[11:16] + vq[:1] + cv[4:8] + vq[1:3] + [pv[1]] + vq[3:]
            S.add([x for x in seq if x is not None])
        self.stamp(S, 10)
        I("s_lshl_b32 %s, %s, 15" % (sr(sT0), sr(sU0)))
        I("s_lshl_b32 %s, %s, 11" % (sr(sT1), sr(sH)))
        I("s_add_u32 %s, %s, %s" % (sr(sT0), sr(sT0), sr(sT1)))
        I("s_add_u32 %s, %s, %s" % (sr(sT0), sr(sT0), sr(sGB)))
        I("s_add_u32 %s, %s, 0x%x" % (sr(sT0), sr(sT0), W_O))
        I("s_lshl_b32 %s, %s, 4" % (sr(sT1), sr(sU0)))
        I("s_add_u32 %s, %s, %s" % (sr(sT1), sr(sT1), sr(sH)))
        I("s_add_u32 %s, %s, %s" % (sr(sT1), sr(sT1), sr(sU7)))
        I("v_mov_b32 %s, %s" % (vr(t0), vr(O + 12)))
        I("v_mov_b32 %s, %s" % (vr(t1), vr(O + 12)))
        I("v_permlane32_swap_b32 %s, %s" % (vr(t0), vr(t1)))
        I("v_rcp_f32 %s, %s" % (vr(t0), vr(t1)))
        for r in range(8):
            I("v_pk_mul_f32 %s, %s, %s op_sel_hi:[1,0]" % (vr(O + 2 * r, 2), vr(O + 2 * r, 2), vr(t0, 2)))
        for r in range(8):
            I("v_cvt_pk_bf16_f32 %s, %s, %s" % (vr(P + r), vr(O + 2 * r), vr(O + 2 * r + 1)))
        I("s_mov_b32 exec_lo, 0")
        I("v_mov_b32 %s, 0" % vr(P + 6))
        I("s_mov_b32 exec_lo, -1")
        st = [I("buffer_store_dwordx4 %s, %s, %s, %s offen offset:%d%s" % (vr(P + 4 * u, 4), vr(vL16), R(rWS), sr(sT0), u * 1024, pol)) for u in range(2)]
        S.wait(st)
        I("buffer_store_byte %s, %s, %s, %s offen offset:%d%s" % (vr(vONE), vr(vZ1), R(rWS), sr(sT1), F_O - F_QKV, pol))
        self.stamp(S, 11)
        return gtok

    def gu_dma(self, S, k0, k1, lds):
        I = S.I
        vG = 240
        if k0 == 0:
            I("v_lshrrev_b32 v236, 3, v0")
            I("v_bfe_u32 v237, v0, 4, 1")
            I("v_lshlrev_b32 v237, 1, v237")
            I("s_lshl_b32 %s, %s, 2" % (sr(sT0), sr(sCG)))
            I("v_and_b32 v238, 7, v0")
            I("v_xor_b32 v237, v237, v238")
            I("v_xor_b32 v237, %s, v237" % sr(sT0))
            I("v_mul_u32_u24 v236, 3584, v236")
            I("v_lshl_add_u32 v236, v237, 4, v236")
            I("s_mul_i32 %s, %s, %d" % (sr(sT0), sr(sTT), 8 * 3584))
            I("s_lshl_b32 %s, %s, 7" % (sr(sT1), sr(sS)))
            I("s_add_u32 %s, %s, %s" % (sr(sT0), sr(sT0), sr(sT1)))
            I("v_add_u32 %s, %s, v236" % (vr(vG), sr(sT0)))
            I("s_lshl_b32 %s, %s, 11" % (sr(sU5), sr(sTT)))
            I("s_lshl_b32 %s, %s, 10" % (sr(sT0), sr(sCG)))
            I("s_add_u32 %s, %s, %s" % (sr(sU5), sr(sU5), sr(sT0)))
        toks = []
        for k in range(k0, k1):
            I("s_add_u32 m0, %s, %d" % (sr(sU5), lds + (k - k0) * 4096))
            I("s_mov_b32 %s, %d" % (sr(sOFF), k * 16 * 3584))
            toks.append(I("buffer_load_dwordx4 %s, %s, %s offen lds" % (vr(vG), R(rWGU), sr(sOFF))))
        return toks

    def gu_read(self, S, k0, k1, lds, va):
        I = S.I
        I("v_bfe_u32 v236, v0, 4, 1")
        I("v_bfe_u32 v237, v0, 3, 1")
        I("v_lshl_add_u32 v237, v236, 1, v237")
        I("v_xor_b32 v237, %s, v237" % sr(sW))
        I("v_lshlrev_b32 v237, 5, v237")
        I("v_lshl_add_u32 v237, v236, 10, v237")
        I("v_and_b32 v236, 3, v0")
        I("v_lshl_add_u32 v237, v236, 3, v237")
        I("v_bfe_u32 v236, v0, 2, 2")
        I("v_lshl_add_u32 v237, v236, 7, v237")
        I("v_lshrrev_b32 v236, 5, v0")
        I("v_lshl_add_u32 v237, v236, 9, v237")
        I("v_add_u32 %s, %d, v237" % (vr(va), lds))
        out = []
        for k in range(k0, k1):
            for jj in range(2):
                out.append(I("ds_read_b64_tr_b16 %s, %s offset:%d" % (ar(k * 4 + 2 * jj, 2), vr(va), (k - k0) * 4096 + jj * 2048)))
        return out

    def phase_c(self, S, pol, gtok):
        I = S.I
        BF, A0, A1, XR, RX, PT = 16, 80, 96, 112, 120, 136
        HE, HL = 192, 208
        t0, t1, t2, t3 = 152, 153, 154, 155
        I("s_barrier")
        I("v_and_b32 %s, 31, v0" % vr(t0))
        I("v_lshrrev_b32 %s, 5, v0" % vr(t1))
        I("v_bfe_u32 %s, v0, 1, 3" % vr(t2))
        I("s_lshl_b32 %s, %s, 2" % (sr(sT0), sr(sCG)))
        I("v_xor_b32 %s, %s, %s" % (vr(t2), sr(sT0), vr(t2)))
        I("v_lshlrev_b32 %s, 4, %s" % (vr(t2), vr(t2)))
        I("v_lshl_add_u32 %s, %s, 7, %s" % (vr(t2), vr(t0), vr(t2)))
        I("v_lshl_add_u32 %s, %s, 3, %s" % (vr(t2), vr(t1), vr(t2)))
        I("s_lshl_b32 %s, %s, 12" % (sr(sT0), sr(sTT)))
        I("s_add_u32 %s, %s, %d" % (sr(sT0), sr(sT0), L_XR))
        I("v_add_u32 %s, %s, %s" % (vr(t2), sr(sT0), vr(t2)))
        for j in range(4):
            I("v_xor_b32 %s, %d, %s" % (vr(t3), j * 16, vr(t2)))
            I("ds_read_b64 %s, %s" % (vr(XR + 2 * j, 2), vr(t3)))
        self.gu_read(S, 0, 12, L_G1, 156)
        I("s_lshl_b32 %s, %s, 4" % (sr(sT0), sr(sT)))
        I("s_lshl_b32 %s, %s, 3" % (sr(sT1), sr(sCG)))
        I("s_add_u32 %s, %s, %s" % (sr(sT0), sr(sT0), sr(sT1)))
        I("s_add_u32 %s, %s, %s" % (sr(sT0), sr(sT0), sr(sU7)))
        I("v_and_b32 %s, 4, %s" % (vr(t0), vr(vL4)))
        I("s_lshl_b32 %s, %s, 15" % (sr(sT2), sr(sT)))
        I("s_lshl_b32 %s, %s, 14" % (sr(sT1), sr(sCG)))
        I("s_add_u32 %s, %s, %s" % (sr(sT2), sr(sT2), sr(sT1)))
        I("s_add_u32 %s, %s, %s" % (sr(sT2), sr(sT2), sr(sGB)))
        I("s_add_u32 %s, %s, 0x%x" % (sr(sT2), sr(sT2), W_O))
        self.poll(S, ["buffer_load_dword %s, %s, %s, %s offen offset:%d sc1" % (vr(t1), vr(t0), R(rWS), sr(sT0), F_O - F_QKV)],
                  ["v_cmp_ne_u32 vcc, 0x01010101, %s" % vr(t1)])
        self.stamp(S, 12)
        for f in range(16):
            I("buffer_load_dwordx4 %s, %s, %s, %s offen offset:%d sc1" % (vr(BF + f * 4, 4), vr(vL16), R(rWS), sr(sT2), (f % 4) * 1024))
            if f % 4 == 3 and f < 15:
                I("s_add_u32 %s, %s, 4096" % (sr(sT2), sr(sT2)))
        g2 = self.gu_dma(S, 12, 28, L_G2)
        I("s_lshl_b32 %s, %s, 12" % (sr(sT0), sr(sW)))
        I("s_add_u32 %s, %s, %d" % (sr(sT0), sr(sT0), L_EX))
        I("v_add_u32 %s, %s, %s" % (vr(t0), sr(sT0), vr(vL16)))
        I("v_xor_b32 %s, 0x2000, %s" % (vr(t1), vr(t0)))
        I("s_mov_b32 %s, 0xffff0000" % sr(sU1))
        for j in range(8):
            I("v_lshlrev_b32 %s, 16, %s" % (vr(A0 + 2 * j), vr(XR + j)))
            I("v_and_b32 %s, %s, %s" % (vr(A0 + 2 * j + 1), sr(sU1), vr(XR + j)))
        for f in range(16):
            for sl in (1, 0):
                acc = [A0, A1][sl]
                I("%s %s, %s, %s, %s" % (MF, vr(acc, 16), ar(112 + (f * 2 + sl) * 4, 4), vr(BF + f * 4, 4),
                                        "0" if (f == 0 and sl == 1) else vr(acc, 16)))
        wr = [I("ds_write_b128 %s, %s offset:%d" % (vr(t0), vr(A1 + 4 * q, 4), q * 1024)) for q in range(4)]
        S.wait(wr)
        I("s_barrier")
        for q in range(4):
            I("ds_read_b128 %s, %s offset:%d" % (vr(RX + 4 * q, 4), vr(t1), q * 1024))
        I("s_mul_i32 %s, %s, %d" % (sr(sT0), sr(sT), 14 * 256))
        I("s_add_u32 %s, %s, %s" % (sr(sT0), sr(sT0), sr(sGB)))
        I("s_add_u32 %s, %s, 0x%x" % (sr(sT0), sr(sT0), W_ST))
        I("s_lshl_b32 %s, %s, 8" % (sr(sT1), sr(sCTG)))
        I("s_add_u32 %s, %s, %s" % (sr(sT1), sr(sT1), sr(sT0)))
        for r in range(8):
            I("v_pk_add_f32 %s, %s, %s" % (vr(A0 + 2 * r, 2), vr(A0 + 2 * r, 2), vr(RX + 2 * r, 2)))
        I("v_pk_add_f32 %s, %s, %s" % (vr(t0, 2), vr(A0, 2), vr(A0 + 2, 2)))
        I("v_pk_mul_f32 %s, %s, %s" % (vr(t2, 2), vr(A0, 2), vr(A0, 2)))
        for r in range(1, 8):
            if r > 1:
                I("v_pk_add_f32 %s, %s, %s" % (vr(t0, 2), vr(t0, 2), vr(A0 + 2 * r, 2)))
            I("v_pk_fma_f32 %s, %s, %s, %s" % (vr(t2, 2), vr(A0 + 2 * r, 2), vr(A0 + 2 * r, 2), vr(t2, 2)))
        I("v_add_f32 %s, %s, %s" % (vr(t0), vr(t0), vr(t1)))
        I("v_add_f32 %s, %s, %s" % (vr(t2), vr(t2), vr(t3)))
        I("v_permlane32_swap_b32 %s, %s" % (vr(t0), vr(t2)))
        I("v_add_f32 %s, %s, %s" % (vr(t0), vr(t0), vr(t2)))
        I("v_or_b32 %s, 1, %s" % (vr(t0), vr(t0)))
        I("buffer_store_dword %s, %s, %s, %s offen%s" % (vr(t0), vr(vL4), R(rWS), sr(sT1), pol))
        self.stamp(S, 13)
        loads = ["buffer_load_dword %s, %s, %s, %s offen offset:%d sc1" % (vr(PT + q), vr(vL4), R(rWS), sr(sT0), q * 256) for q in range(14)]
        cm = ["v_min3_u32 %s, %s, %s, %s" % (vr(t1), vr(PT), vr(PT + 1), vr(PT + 2)),
              "v_min3_u32 %s, %s, %s, %s" % (vr(t2), vr(PT + 3), vr(PT + 4), vr(PT + 5)),
              "v_min3_u32 %s, %s, %s, %s" % (vr(t1), vr(t1), vr(PT + 6), vr(PT + 7)),
              "v_min3_u32 %s, %s, %s, %s" % (vr(t2), vr(t2), vr(PT + 8), vr(PT + 9)),
              "v_min3_u32 %s, %s, %s, %s" % (vr(t1), vr(t1), vr(PT + 10), vr(PT + 11)),
              "v_min3_u32 %s, %s, %s, %s" % (vr(t2), vr(t2), vr(PT + 12), vr(PT + 13)),
              "v_min_u32 %s, %s, %s" % (vr(t1), vr(t1), vr(t2)),
              "v_cmp_eq_u32 vcc, 0, %s" % vr(t1)]
        self.poll(S, loads, cm)
        self.stamp(S, 14)
        for a, b in ((0, 2), (4, 6), (8, 10), (0, 12), (4, 8), (0, 4)):
            I("v_pk_add_f32 %s, %s, %s" % (vr(PT + a, 2), vr(PT + a, 2), vr(PT + b, 2)))
        I("v_add_f32 %s, %s, %s" % (vr(t0), vr(PT), vr(PT + 1)))
        I("v_mul_f32 %s, 0x%x, %s" % (vr(t0), f2u(1.0 / 448.0), vr(t0)))
        I("v_mov_b32 %s, %s" % (vr(t1), vr(t0)))
        I("v_permlane32_swap_b32 %s, %s" % (vr(t0), vr(t1)))
        I("v_fma_f32 %s, -%s, %s, %s" % (vr(t1), vr(t0), vr(t0), vr(t1)))
        I("v_max_f32 %s, 0, %s" % (vr(t1), vr(t1)))
        I("v_add_f32 %s, 0x%x, %s" % (vr(t1), f2u(1e-5), vr(t1)))
        I("v_rsq_f32 %s, %s" % (vr(t2), vr(t1)))
        I("v_mul_f32 %s, -%s, %s" % (vr(t3), vr(t0), vr(t2)))
        for r in range(8):
            I("v_pk_fma_f32 %s, %s, %s, %s op_sel:[0,0,1] op_sel_hi:[1,0,1]" % (vr(RX + 2 * r, 2), vr(A0 + 2 * r, 2), vr(t2, 2), vr(t2, 2)))
        for r in range(8):
            I("v_cvt_pk_bf16_f32 %s, %s, %s" % (vr(XR + r), vr(RX + 2 * r), vr(RX + 2 * r + 1)))
        I("s_mul_i32 %s, %s, 28672" % (sr(sT0), sr(sT)))
        I("s_lshl_b32 %s, %s, 11" % (sr(sT1), sr(sCTG)))
        I("s_add_u32 %s, %s, %s" % (sr(sT0), sr(sT0), sr(sT1)))
        I("s_add_u32 %s, %s, %s" % (sr(sT0), sr(sT0), sr(sGB)))
        I("s_add_u32 %s, %s, 0x%x" % (sr(sT0), sr(sT0), W_HN))
        st = [I("buffer_store_dwordx4 %s, %s, %s, %s offen offset:%d%s" % (vr(XR + 4 * u, 4), vr(vL16), R(rWS), sr(sT0), u * 1024, pol)) for u in range(2)]
        I("s_lshl_b32 %s, %s, 4" % (sr(sT1), sr(sT)))
        I("s_add_u32 %s, %s, %s" % (sr(sT1), sr(sT1), sr(sCTG)))
        I("s_add_u32 %s, %s, %s" % (sr(sT1), sr(sT1), sr(sU7)))
        I("s_sub_u32 %s, %s, 1" % (sr(sT2), sr(sTT)))
        I("s_not_b32 %s, %s" % (sr(sT3), sr(sT2)))
        for r in range(16):
            I("v_and_b32 %s, %s, %s" % (vr(HE + r), sr(sT2), vr(A0 + r)))
            I("v_and_b32 %s, %s, %s" % (vr(HL + r), sr(sT3), vr(A0 + r)))
        S.wait(st)
        I("buffer_store_byte %s, %s, %s, %s offen offset:%d%s" % (vr(vONE), vr(vZ1), R(rWS), sr(sT1), F_HN - F_QKV, pol))
        self.stamp(S, 15)
        I("s_barrier")
        rd = self.gu_read(S, 12, 28, L_G2, 156)
        S.wait(rd)
        I("s_barrier")

    def efrag(self, s_, sl):
        i = s_ * 2 + sl
        return ("a", 112 + i * 4) if i < 36 else ("v", 16 + (i - 36) * 4)

    def phase_d(self, S, pol):
        I = S.I
        AC, BR, GT, PK = 96, 128, 152, 176
        vC1, vC2, vHB2, vT0, vT1 = 180, 181, 182, 183, 184
        vWD = 186
        NB = 6
        order = [0, 2, 4, 6, 1, 3, 5, 7]
        t0, t1, t2 = 152, 153, 154
        I("v_and_b32 %s, 127, %s" % (vr(t0), vr(vL4)))
        I("v_and_b32 %s, 3, v0" % vr(t1))
        I("v_cmp_eq_u32 vcc, 3, %s" % vr(t1))
        I("v_mov_b32 %s, 0x01010101" % vr(t2))
        I("v_mov_b32 %s, 0x101" % vr(155))
        I("v_cndmask_b32 %s, %s, %s, vcc" % (vr(t2), vr(t2), vr(155)))
        c1 = -2.0 * 0.7978845608028654 * 1.4426950408889634
        I("v_mov_b32 %s, 0x%x" % (vr(vC1), f2u(c1)))
        I("v_mov_b32 %s, 0x%x" % (vr(vC2), f2u(c1 * 0.044715)))
        I("v_add_u32 %s, %d, %s" % (vr(vHB2), 57344, vr(vL16)))
        I("s_mul_i32 %s, %s, 7168" % (sr(sU0), sr(sW)))
        I("s_add_u32 %s, %s, %s" % (sr(sU1), sr(sU0), sr(sGB)))
        I("s_add_u32 %s, %s, 0x%x" % (sr(sU1), sr(sU1), W_HN))
        I("s_lshl_b32 %s, %s, 14" % (sr(sU2), sr(sW)))
        I("s_add_u32 %s, %s, %d" % (sr(sU2), sr(sU2), L_WD))
        I("s_mul_i32 %s, %s, %d" % (sr(sT0), sr(sW), 448 * 896))
        I("s_lshl_b32 %s, %s, 7" % (sr(sT1), sr(sC)))
        I("s_add_u32 %s, %s, %s" % (sr(sT0), sr(sT0), sr(sT1)))
        I("v_add_u32 %s, %s, %s" % (vr(vWD), sr(sT0), vr(vD896)))
        for q in range(1, 4):
            I("v_add_u32 %s, %d, %s" % (vr(vWD + q), q * (7168 - 1024), vr(vWD)))
        I("s_lshl_b32 %s, %s, 6" % (sr(sT0), sr(sCG)))
        I("v_xor_b32 %s, %s, %s" % (vr(vT0), sr(sT0), vr(vTRB)))
        I("v_lshrrev_b32 %s, 5, v0" % vr(t1))
        I("v_lshl_add_u32 %s, %s, 9, %s" % (vr(vT0), vr(t1), vr(vT0)))
        I("v_add_u32 %s, %s, %s" % (vr(vT0), sr(sU2), vr(vT0)))
        I("v_xor_b32 %s, 64, %s" % (vr(vT1), vr(vT0)))
        I("s_lshl_b32 %s, %s, 2" % (sr(sT0), sr(sS)))
        I("s_add_u32 %s, %s, %s" % (sr(sT0), sr(sT0), sr(sW)))
        I("s_add_u32 %s, %s, %s" % (sr(sU4), sr(sT0), sr(sU7)))
        I("s_lshl_b32 %s, %s, 10" % (sr(sU3), sr(sT0)))
        I("s_add_u32 %s, %s, %s" % (sr(sU3), sr(sU3), sr(sGB)))
        self.poll(S, ["buffer_load_dword %s, %s, %s, %s offen offset:%d sc1" % (vr(t1), vr(t0), R(rWS), sr(sU7), F_HN - F_QKV)],
                  ["v_cmp_ne_u32 vcc, %s, %s" % (vr(t2), vr(t1))])
        self.stamp(S, 16)
        htok, wtok = {}, {}

        def hdma(n):
            out = []
            for half in range(2):
                out.append([Ins("s_add_u32 m0, %s, %d" % (sr(sU0), L_HR + (n % 3) * 28672 + half * 4096)),
                            Ins("s_add_u32 %s, %s, %d" % (sr(sOFF), sr(sU1), order[n] * 28672 + half * 4096))])
                for q in range(4 - half):
                    x = Ins("buffer_load_dwordx4 %s, %s, %s offen offset:%d sc1 lds" % (vr(vL16), R(rWS), sr(sOFF), q * 1024))
                    out.append([x])
                    htok[n] = x
            return out

        def wdma(b):
            out = []
            for half in range(2):
                out.append([Ins("s_add_u32 m0, %s, %d" % (sr(sU2), (b % 2) * 8192 + half * 4096)),
                            Ins("s_mov_b32 %s, %d" % (sr(sOFF), (b * 8 + half * 4) * 7168))])
                for q in range(4):
                    x = Ins("buffer_load_dwordx4 %s, %s, %s offen offset:%d lds" % (vr(vWD + q), R(rWD), sr(sOFF), q * 1024))
                    out.append([x])
                    wtok[b] = x
            return out

        def wread(b):
            out = []
            for p in range(8):
                s_, jj = divmod(b * 8 + p, 2)
                for sl in range(2):
                    k, r = self.efrag(s_, sl)
                    d = (ar if k == "a" else vr)(r + 2 * jj, 2)
                    out.append([Ins("ds_read_b64_tr_b16 %s, %s offset:%d" % (d, vr([vT0, vT1][sl]), (b % 2) * 8192 + p * 1024))])
            return out

        def bread(step):
            n, ks = divmod(step, 28)
            slot = n % 3
            base, off = (vL16, slot * 28672) if slot < 2 else (vHB2, 0)
            return Ins("ds_read_b128 %s, %s offset:%d" % (vr(BR + (step % NB) * 4, 4), vr(base), L_HR + off + ks * 1024))

        atok = {}

        def gelu(n):
            acc = AC + (n % 2) * 16
            out = []
            for h in range(2):
                g = [acc + 4 * h + i for i in range(4)]
                u = [acc + 8 + 4 * h + i for i in range(4)]
                t = [GT + 4 * h + i for i in range(4)]
                out += [Ins("v_mul_f32 %s, %s, %s" % (vr(t[i]), vr(g[i]), vr(g[i]))) for i in range(4)]
                out += [Ins("v_fma_f32 %s, %s, %s, %s" % (vr(t[i]), vr(t[i]), vr(vC2), vr(vC1))) for i in range(4)]
                out += [Ins("v_mul_f32 %s, %s, %s" % (vr(t[i]), vr(t[i]), vr(g[i]))) for i in range(4)]
                for i in range(4):
                    out.append(Ins("v_exp_f32 %s, %s" % (vr(t[i]), vr(t[i]))))
                    out.append(Ins("v_mul_f32 %s, %s, %s" % (vr(u[i]), vr(u[i]), vr(g[i]))))
                for i in range(4):
                    out.append(Ins("v_add_f32 %s, 1.0, %s" % (vr(t[i]), vr(t[i]))))
                    out.append(Ins("v_rcp_f32 %s, %s" % (vr(t[i]), vr(t[i]))))
                out += [Ins("v_mul_f32 %s, %s, %s" % (vr(u[i]), vr(u[i]), vr(t[i]))) for i in range(4)]
                out += [Ins("v_cvt_pk_bf16_f32 %s, %s, %s" % (vr(PK + 2 * h + i), vr(u[2 * i]), vr(u[2 * i + 1]))) for i in range(2)]
            out.append(Ins("s_add_u32 %s, %s, 0x%x" % (sr(sOFF2), sr(sU3), self.W_ACT + order[n] * 114688)))
            x = Ins("buffer_store_dwordx4 %s, %s, %s, %s offen%s" % (vr(PK, 4), vr(vL16), R(rWS), sr(sOFF2), pol))
            atok[n] = x
            out.append(x)
            return out

        def aflag(n):
            return [Wait([atok[n]]),
                    Ins("buffer_store_byte %s, %s, %s, %s offen offset:%d%s" % (
                        vr(vONE), vr(vZ1), R(rWS), sr(sU4), F_ACT - F_QKV + order[n] * 128, pol))]

        cost = lambda x: 2 if isinstance(x, Ins) and x.op in ("v_exp_f32", "v_rcp_f32") else 1
        for x in hdma(0) + hdma(1):
            S.add(x)
        S.wait(htok[0])
        I("s_barrier")
        LOOK = NB - 2
        for s_ in range(LOOK):
            S.add([bread(s_)])
        for n in range(8):
            acc = AC + (n % 2) * 16
            mem = []
            if n >= 1:
                if n + 1 < 8:
                    mem += hdma(n + 1)
            if n < 7:
                mem += wdma(n)
            ge = gelu(n - 1) if n >= 1 else []
            rd = wread(n - 1) if n >= 1 else []
            if rd:
                rd[0] = [Wait([wtok[n - 1]])] + rd[0]
            for ks in range(28):
                step = n * 28 + ks
                I("%s %s, %s, %s, %s" % (MF, vr(acc, 16), ar(ks * 4, 4), vr(BR + (step % NB) * 4, 4),
                                        "0" if ks == 0 else vr(acc, 16)))
                budget = 5
                if mem:
                    x = mem.pop(0)
                    S.add(x)
                    budget -= len(x)
                nx = step + LOOK
                if nx < 224:
                    if nx % 28 == 0:
                        if n >= 2:
                            S.add(aflag(n - 2))
                        S.wait(htok[n + 1])
                        I("s_barrier")
                        budget -= 2
                    S.add([bread(nx)])
                    budget -= 1
                if ks >= 10 and rd:
                    S.add(rd.pop(0))
                    budget -= 1
                if ks >= 2:
                    while ge and budget > 0:
                        x = ge.pop(0)
                        S.add([x])
                        budget -= cost(x)
            for x in mem + rd:
                S.add(x)
            S.add(ge)
            self.stamp(S, 17 + n)
        S.add(aflag(5))
        S.add(gelu(7))
        S.add(aflag(6))
        S.add(aflag(7))
        self.stamp(S, 25)

    def phase_e(self, S, pol):
        I = S.I
        HE, HL, E1, L1 = 192, 208, 96, 112
        RD, PK = 128, 160
        t0, t1, t2, t3, vRW0, vRW1, vRR = 164, 165, 166, 167, 168, 169, 170
        I("s_barrier")
        I("v_min_u32 %s, 6, v0" % vr(t0))
        I("v_lshlrev_b32 %s, 2, %s" % (vr(t0), vr(t0)))
        I("s_mul_i32 %s, %s, 28" % (sr(sT0), sr(sW)))
        I("s_lshl_b32 %s, %s, 8" % (sr(sT1), sr(sTQ)))
        I("s_add_u32 %s, %s, %s" % (sr(sT1), sr(sT1), sr(sT0)))
        I("s_add_u32 %s, %s, %s" % (sr(sU0), sr(sT1), sr(sU7)))
        I("s_lshl_b32 %s, %s, 10" % (sr(sT0), sr(sT0)))
        I("s_mul_i32 %s, %s, %d" % (sr(sT1), sr(sTQ), 2 * 114688))
        I("s_add_u32 %s, %s, %s" % (sr(sT0), sr(sT0), sr(sT1)))
        I("s_add_u32 %s, %s, %s" % (sr(sU1), sr(sT0), sr(sGB)))
        I("v_and_b32 %s, 31, v0" % vr(t1))
        I("v_lshrrev_b32 %s, 5, v0" % vr(t2))
        I("v_mul_u32_u24 %s, 272, %s" % (vr(t1), vr(t1)))
        I("v_lshl_add_u32 %s, %s, 4, %s" % (vr(t1), vr(t2), vr(t1)))
        I("s_mul_i32 %s, %s, %d" % (sr(sT0), sr(sW), RED_W))
        I("s_lshl_b32 %s, %s, 7" % (sr(sT1), sr(sCG)))
        I("s_add_u32 %s, %s, %s" % (sr(sT2), sr(sT0), sr(sT1)))
        I("v_add_u32 %s, %s, %s" % (vr(vRW0), sr(sT2), vr(t1)))
        I("s_xor_b32 %s, %s, 128" % (sr(sT1), sr(sT1)))
        I("s_add_u32 %s, %s, %s" % (sr(sT2), sr(sT0), sr(sT1)))
        I("v_add_u32 %s, %s, %s" % (vr(vRW1), sr(sT2), vr(t1)))
        I("v_lshrrev_b32 %s, 3, v0" % vr(t1))
        I("v_and_b32 %s, 7, v0" % vr(t2))
        I("v_mul_u32_u24 %s, 272, %s" % (vr(vRR), vr(t1)))
        I("v_lshl_add_u32 %s, %s, 5, %s" % (vr(vRR), vr(t2), vr(vRR)))
        I("s_mul_i32 %s, %s, %d" % (sr(sT0), sr(sW), 8 * 272))
        I("v_add_u32 %s, %s, %s" % (vr(vRR), sr(sT0), vr(vRR)))
        I("v_mul_u32_u24 %s, 896, %s" % (vr(t3), vr(t1)))
        I("v_lshl_add_u32 %s, %s, 4, %s" % (vr(t3), vr(t2), vr(t3)))
        I("s_mul_i32 %s, %s, %d" % (sr(sT0), sr(sW), 8 * 896))
        I("s_lshl_b32 %s, %s, 7" % (sr(sT1), sr(sC)))
        I("s_add_u32 %s, %s, %s" % (sr(sT0), sr(sT0), sr(sT1)))
        I("s_add_u32 %s, %s, %s" % (sr(sU2), sr(sT0), sr(sU6)))
        for tt in range(2):
            accs = [HE, E1] if tt == 0 else [HL, L1]
            self.poll(S, ["buffer_load_dword %s, %s, %s, %s offen offset:%d sc1" % (vr(t1), vr(t0), R(rWS), sr(sU0), F_ACT - F_QKV + tt * 128)],
                      ["v_cmp_ne_u32 vcc, 0x01010101, %s" % vr(t1)])
            self.stamp(S, 26 + 2 * tt)
            for f in range(28):
                if f % 4 == 0:
                    I("s_add_u32 %s, %s, 0x%x" % (sr(sOFF), sr(sU1), self.W_ACT + tt * 114688 + f * 1024))
                I("buffer_load_dwordx4 %s, %s, %s, %s offen offset:%d sc1" % (ar(f * 4, 4), vr(vL16), R(rWS), sr(sOFF), (f % 4) * 1024))
            for f in range(28):
                for sl in range(2):
                    k, r = self.efrag(f, sl)
                    I("%s %s, %s, %s, %s" % (MF, vr(accs[sl], 16), (ar if k == "a" else vr)(r, 4), ar(f * 4, 4),
                                            "0" if (f == 0 and sl == 1) else vr(accs[sl], 16)))
            self.stamp(S, 27 + 2 * tt)
            base = L_RED + tt * 4 * RED_W
            wr = []
            for sl in range(2):
                for j in range(4):
                    wr.append(I("ds_write_b128 %s, %s offset:%d" % (vr([vRW0, vRW1][sl]), vr(accs[sl] + 4 * j, 4), base + j * 32)))
            S.wait(wr)
            I("s_barrier")
            for src in range(4):
                for q in range(2):
                    I("ds_read_b128 %s, %s offset:%d" % (vr(RD + src * 8 + q * 4, 4), vr(vRR), base + src * RED_W + q * 16))
            for a, b in ((0, 8), (16, 24), (0, 16)):
                for r in range(4):
                    I("v_pk_add_f32 %s, %s, %s" % (vr(RD + a + 2 * r, 2), vr(RD + a + 2 * r, 2), vr(RD + b + 2 * r, 2)))
            for r in range(4):
                I("v_cvt_pk_bf16_f32 %s, %s, %s" % (vr(PK + r), vr(RD + 2 * r), vr(RD + 2 * r + 1)))
            I("s_add_u32 %s, %s, %d" % (sr(sOFF2), sr(sU2), tt * 32 * 896))
            I("buffer_store_dwordx4 %s, %s, %s, %s offen" % (vr(PK, 4), vr(t3), R(rOUT), sr(sOFF2)))

    def worker(self, mode):
        self.tag = "w" + mode
        S = Stream()
        pol = "" if mode == "f" else " sc1"
        self.prologue(S)

        def fork(S_, vt, va):
            self.b3_check(S_, vt, va, "L_worker_slow")
            S_.L("L_fork_" + self.tag)

        pre = self.phase_a(S, pol, fork)
        gtok = self.phase_b(S, pol, True, pre)
        self.phase_c(S, pol, gtok)
        self.phase_d(S, pol)
        self.phase_e(S, pol)
        self.finish(S)
        return S

    def spare(self, mode):
        self.tag = "s" + mode
        S = Stream()
        I = S.I
        pol = "" if mode == "f" else " sc1"
        nl = self.lab("nolead")
        I("s_cmp_lg_u32 %s, 31" % sr(sS))
        I("s_cbranch_scc1 %s" % nl)
        for r in range(4):
            I("v_mov_b32 %s, 0" % vr(16 + r))
        I("s_mul_i32 %s, %s, 3072" % (sr(sT0), sr(sW)))
        I("s_add_u32 %s, %s, %s" % (sr(sT0), sr(sT0), sr(sGB)))
        I("s_add_u32 %s, %s, 0x%x" % (sr(sT0), sr(sT0), W_FL))
        for q in range(3):
            I("buffer_store_dwordx4 %s, %s, %s, %s offen offset:%d sc1" % (vr(16, 4), vr(vL16), R(rWS), sr(sT0), q * 1024))
        I("s_waitcnt vmcnt(0)")
        I("s_barrier")
        I("v_mov_b32 v20, %s" % sr(sXCC))
        I("s_lshl_b32 %s, %s, 2" % (sr(sT0), sr(sG)))
        I("s_lshl_b32 %s, %s, 20" % (sr(sT1), sr(sW)))
        I("s_add_u32 %s, %s, %s" % (sr(sT0), sr(sT0), sr(sT1)))
        I("buffer_store_dword v20, %s, %s, %s offen sc1" % (vr(vZ1), R(rDBG), sr(sT0)))
        I("s_waitcnt vmcnt(0)")
        S.L(nl)
        self.b2_issue(S, 248)
        self.b2_check(S, 248)
        self.b3_issue(S, 249, 250)
        self.b3_check(S, 249, 250, "L_spare_slow")
        S.L("L_fork_" + self.tag)
        self.phase_b(S, pol, False)
        self.finish(S)
        return S

    def build(self):
        def fin(S):
            n0 = len(self.ool)
            return S.finalize(), n0

        def cut(lines, label):
            i = lines.index(label + ":")
            return lines[i + 1:]

        out = []
        wf = self.worker("f").finalize()
        ool_f = list(self.ool)
        self.ool = []
        sf = self.spare("f").finalize()
        ool_f += self.ool
        self.ool = []
        ws = cut(self.worker("s").finalize(), "L_fork_ws")
        ss = cut(self.spare("s").finalize(), "L_fork_ss")
        out += wf
        out.append("L_spare:")
        out += sf
        for o in ool_f:
            out += o.finalize()
        out.append("L_end:")
        out.append("  s_endpgm")
        out.append("L_worker_slow:")
        out += ws
        out.append("L_spare_slow:")
        out += ss
        ref = open(os.path.join(os.path.dirname(os.path.abspath(__file__)), "header.txt")).read()
        head = ref + "; @launch grid=(256,1,1) block=(256,1,1) lds=%d\n" % LDS_BYTES
        head += '.amdgcn_target "amdgcn-amd-amdhsa--gfx950"\n.text\n.globl %s_kernel\n.p2align 8\n.type %s_kernel,@function\n%s_kernel:\n' % (NAME, NAME, NAME)
        tail = """.section .rodata,"a"
.p2align 6
.amdhsa_kernel %s_kernel
  .amdhsa_next_free_vgpr 512
  .amdhsa_next_free_sgpr 102
  .amdhsa_accum_offset 256
  .amdhsa_group_segment_fixed_size 0
  .amdhsa_kernarg_size 80
  .amdhsa_user_sgpr_count 2
  .amdhsa_user_sgpr_kernarg_segment_ptr 1
  .amdhsa_system_sgpr_workgroup_id_x 1
.end_amdhsa_kernel
""" % NAME
        return head + "\n".join(out) + "\n" + tail


def make(**kw):
    cfg = Cfg()
    for k, v in kw.items():
        assert hasattr(cfg, k), k
        setattr(cfg, k, v)
    return Gen(cfg).build()


if __name__ == "__main__":
    kw = {}
    outp = "cdna_kernels/%s.s" % NAME
    for a in sys.argv[1:]:
        k, v = a.split("=")
        if k == "out":
            outp = v
        else:
            kw[k] = eval(v)
    open(outp, "w").write(make(**kw))
    print("wrote", outp)
```
